```python
import torch

def _softmax(x, axis=-1):
    return torch.softmax(x, dim=axis)
def _gelu(x):
    return torch.nn.functional.gelu(x, approximate="tanh")
def _silu(x):
    return torch.nn.functional.silu(x)
def _sigmoid(x):
    return torch.sigmoid(x)
def _layernorm(x, axis=-1, eps=1e-5):
    m = x.mean(dim=axis, keepdim=True)
    v = x.var(dim=axis, keepdim=True, unbiased=False)
    return (x - m) / torch.sqrt(v + eps)
def _scatter_add(tgt, idx, src, axis=0):
    return tgt.clone().index_add_(axis, idx, src)
def _segment_sum(src, seg, n):
    out = torch.zeros((n,) + src.shape[1:], dtype=src.dtype)
    return out.index_add_(0, seg, src)
def _pad(x, pw):
    flat = tuple(v for pair in reversed(pw) for v in pair)
    return torch.nn.functional.pad(x, flat)

kernel_name = 'sequential_preLN__sliding_block_cached__glu_gated_bilinear__decode'

def setup_inputs():

    _w = (lambda a: (lambda t: t.to(torch.bfloat16) if t.is_floating_point() else t)(torch.as_tensor(a)))
    def _A_setup():
        B, Sq, D = 4, 1, 512
        Hq, Hkv, Sk, Dh = 32, 32, 4096, 128
        assert Hq % Hkv == 0, (Hq, Hkv)
        return {
            "x": _w((lambda *s: torch.randn(*s, dtype=torch.bfloat16) * 0.05)(B, Sq, D)),
            "k_cache": _w((lambda *s: torch.randn(*s, dtype=torch.bfloat16) * 1.6)(B, Hkv, Sk, Dh)),
            "v_cache": _w((lambda *s: torch.randn(*s, dtype=torch.bfloat16) * 0.8)(B, Hkv, Sk, Dh)),
            "wq": _w((lambda *s: torch.randn(*s, dtype=torch.bfloat16) * 1.6)(D, Hq * Dh) * (D ** -0.5)),
            "wo": _w((lambda *s: torch.randn(*s, dtype=torch.bfloat16) * 0.8)(Hq * Dh, D) * ((Hq * Dh) ** -0.5)),
        }
    _A_in = _A_setup()

    def _B_setup():
        B, S, D, F = 4, 1, 512, 1376
        return {
            "x": _w((lambda *s: torch.randn(*s, dtype=torch.bfloat16) * 0.05)(B, S, D)),
            "w_gate": _w((lambda *s: torch.randn(*s, dtype=torch.bfloat16) * 0.4)(D, F) * (D ** -0.5)),
            "w_up": _w((lambda *s: torch.randn(*s, dtype=torch.bfloat16) * 0.4)(D, F) * (D ** -0.5)),
            "w_down": _w((lambda *s: torch.randn(*s, dtype=torch.bfloat16) * 0.4)(F, D) * (F ** -0.5)),
        }
    _B_in = _B_setup()

    return {
        "A_x": _A_in["x"],
        "A_k_cache": _A_in["k_cache"],
        "A_v_cache": _A_in["v_cache"],
        "A_wq": _A_in["wq"],
        "A_wo": _A_in["wo"],
        "B_x": _B_in["x"],
        "B_w_gate": _B_in["w_gate"],
        "B_w_up": _B_in["w_up"],
        "B_w_down": _B_in["w_down"],
    }

def reference(A_x, A_k_cache, A_v_cache, A_wq, A_wo, B_x, B_w_gate, B_w_up, B_w_down):
    def _A_ref(x, k_cache, v_cache, wq, wo):
        B, Sq, D = x.shape
        Hq, Dh = 32, 128
        Hkv, Sk = k_cache.shape[1], k_cache.shape[2]
        W = min(4096, max(256, Sk // 4))
        rep = Hq // Hkv
        q = (lambda x, *d: x.permute(*d))((x @ wq).reshape(B, Sq, Hq, Dh), 0, 2, 1, 3)
        k = (lambda x, n, axis: torch.repeat_interleave(x, n, dim=axis))(k_cache[:, :, Sk - W:, :], rep, axis=1)
        v = (lambda x, n, axis: torch.repeat_interleave(x, n, dim=axis))(v_cache[:, :, Sk - W:, :], rep, axis=1)
        scores = torch.einsum("bhqd,bhkd->bhqk", q, k) * (Dh ** -0.5)
        p = _softmax(scores, axis=-1)
        o = torch.einsum("bhqk,bhkd->bhqd", p, v)
        return (lambda x, *d: x.permute(*d))(o, 0, 2, 1, 3).reshape(B, Sq, Hq * Dh) @ wo

    def _B_ref(x, w_gate, w_up, w_down):
        g = torch.einsum("bsd,df->bsf", x, w_gate)
        u = torch.einsum("bsd,df->bsf", x, w_up)
        h = g * u
        return torch.einsum("bsf,fd->bsd", h, w_down)

    x = A_x
    h = x + _A_ref(_layernorm(x, axis=-1), A_k_cache, A_v_cache, A_wq, A_wo)
    h2 = h + _B_ref(_layernorm(h, axis=-1), B_w_gate, B_w_up, B_w_down)
    return h2
```

```python
import sys
sys.path.insert(0, 'tools')
from asmgen import *

LOG2E = 1.4426950408889634
import struct
def f2u(f):
    return struct.unpack('<I', struct.pack('<f', f))[0]
def fhex(f):
    return '0x%08x' % f2u(f)

DPPALL = 'row_mask:0xf bank_mask:0xf'

WS_YP = 0x0
WS_ML = 0x80000
WS_H  = 0x81000
WS_ST = 0x82000
WS_FP = 0x84000
NFF = 86

def rbf16(a, dst, src, tmp=None):
    t = tmp or dst
    a(f'v_cvt_pk_bf16_f32 {t}, {src}, {src}')
    a(f'v_and_b32 {dst}, 0xffff0000, {t}')

def row_allreduce(a, op, v, steps=(8, 4, 2, 1)):
    for n in steps:
        a(f'{op}_dpp {v}, {v}, {v} row_ror:{n} {DPPALL}')

def quad_allreduce(a, op, v):
    a(f'{op}_dpp {v}, {v}, {v} quad_perm:[1,0,3,2] {DPPALL}')
    a(f'{op}_dpp {v}, {v}, {v} quad_perm:[2,3,0,1] {DPPALL}')

def cross_allreduce(a, op, v, tmp):
    a(f'v_mov_b32 {tmp}, {v}')
    a(f'v_permlane16_swap_b32 {v}, {tmp}')
    a(f'{op} {v}, {v}, {tmp}')
    a(f'v_mov_b32 {tmp}, {v}')
    a(f'v_permlane32_swap_b32 {v}, {tmp}')
    a(f'{op} {v}, {v}, {tmp}')

def srd(a, d, lo, hi, size, off=None):
    if off is None:
        a(f's_mov_b32 s{d}, {lo}')
        a(f's_mov_b32 s{d+1}, {hi}')
    else:
        a(f's_add_u32 s{d}, {lo}, {off}')
        a(f's_addc_u32 s{d+1}, {hi}, 0')
    a(f's_mov_b32 s{d+2}, {size}')
    a(f's_mov_b32 s{d+3}, 0x20000')

def vr(base, n=4):
    return f'v[{base}:{base+n-1}]'
```

```python
import re
NAME = 'sequential_preLN__sliding_block_cached__glu_gated_bilinear__decode'
HEADER_COMMENT = open('cdna_kernels/' + NAME + '.s.ref').read().split('; Override launch geometry')[0]

REG_RE = re.compile(r'^(-|\|)?(?:abs\()?([vas])(?:(\d+)|\[(\d+):(\d+)\])\)?\|?$')
TRANS = ('v_exp_f32', 'v_log_f32', 'v_rcp_f32', 'v_rsq_f32', 'v_sqrt_f32', 'v_sin_f32', 'v_cos_f32', 'v_rcp_iflag_f32')


def regs_of(tok):
    tok = tok.strip()
    if tok in ('vcc', 'vcc_lo', 'vcc_hi'):
        return {('vcc', 0)}
    if tok in ('exec', 'exec_lo', 'exec_hi'):
        return {('exec', 0)}
    if tok == 'm0':
        return {('m0', 0)}
    m = REG_RE.match(tok)
    if not m:
        return set()
    k = m.group(2)
    if m.group(3) is not None:
        return {(k, int(m.group(3)))}
    return {(k, i) for i in range(int(m.group(4)), int(m.group(5)) + 1)}


class Ins:
    def __init__(self, text):
        self.text = text
        t = text.split(';')[0].strip()
        self.is_label = t.endswith(':')
        self.is_dir = t.startswith('.')
        self.op = ''
        self.ops = []
        self.mods = ''
        if not t or self.is_label or self.is_dir:
            self.kind = 'none'
            return
        parts = t.split(None, 1)
        self.op = parts[0]
        rest = parts[1] if len(parts) > 1 else ''
        ops = []
        depth = 0
        cur = ''
        for ch in rest:
            if ch == '[':
                depth += 1
            if ch == ']':
                depth -= 1
            if ch == ',' and depth == 0:
                ops.append(cur.strip()); cur = ''
            else:
                cur += ch
        if cur.strip():
            ops.append(cur.strip())
        if ops:
            last = ops[-1].split()
            if last:
                ops[-1] = last[0]
                self.mods = ' '.join(last[1:])
        self.ops = ops
        op = self.op
        base = re.sub(r'_(e32|e64|dpp|sdwa)$', '', op)
        self.base = base
        self.dpp = op.endswith('_dpp') or 'row_' in self.mods or 'quad_perm' in self.mods or 'wave_' in self.mods
        self.wr = set(); self.rd = set()
        R = [regs_of(o) for o in ops]
        allr = set().union(*R) if R else set()
        if op.startswith('v_mfma') or op.startswith('v_smfmac'):
            self.kind = 'mfma'
            self.wr = R[0]; self.srcA = R[1]; self.srcB = R[2]; self.srcC = R[3]
            self.rd = R[1] | R[2] | R[3]
            if '16x16x32' in op or '16x16x16' in op or '16x16x64' in op:
                self.passes = 4
            elif '32x32x16' in op or '32x32x8' in op or '32x32x32' in op:
                self.passes = 8
            elif '4x4x4' in op:
                self.passes = 2
            else:
                self.passes = 16
            if '16x16x4_f32' in op or '32x32x2_f32' in op:
                raise NotImplementedError('sgemm mfma')
        elif op.startswith('v_'):
            self.kind = 'valu'
            if base in ('v_readlane_b32', 'v_readfirstlane_b32'):
                self.wr = R[0]; self.rd = set().union(*R[1:])
            elif base.startswith('v_cmp'):
                self.wr = R[0]; self.rd = set().union(*R[1:])
                if base.startswith('v_cmpx'):
                    self.wr |= {('exec', 0)}
            elif base in ('v_permlane32_swap_b32', 'v_permlane16_swap_b32', 'v_swap_b32'):
                self.wr = R[0] | R[1]; self.rd = R[0] | R[1]
            elif base in ('v_add_co_u32', 'v_sub_co_u32', 'v_subrev_co_u32', 'v_addc_co_u32', 'v_subb_co_u32', 'v_div_scale_f32', 'v_mad_u64_u32'):
                self.wr = R[0] | R[1]; self.rd = set().union(*R[2:])
            elif base == 'v_nop':
                pass
            else:
                self.wr = R[0]; self.rd = set().union(*R[1:]) if len(R) > 1 else set()
                if base in ('v_fmac_f32', 'v_dot2c_f32_bf16', 'v_writelane_b32', 'v_pk_fmac_f16', 'v_mac_f32') or self.dpp:
                    self.rd |= R[0]
                if base == 'v_cndmask_b32' and len(ops) == 3:
                    self.rd |= {('vcc', 0)}
                if base in ('v_div_fmas_f32',):
                    self.rd |= {('vcc', 0)}
            self.trans = base in TRANS
        elif op.startswith('buffer_') or op.startswith('global_') or op.startswith('flat_') or op.startswith('scratch_'):
            self.kind = 'vmem'
            is_store = '_store' in op
            is_atomic = '_atomic' in op
            lds = ('lds' in self.mods.split()) or '_lds_' in op
            self.lds_dma = lds
            if op in ('buffer_wbl2', 'buffer_inv'):
                pass
            elif is_store:
                self.rd = allr
                data = R[0] if op.startswith('buffer_') else R[1]
                self.wide_store = data if len(data) >= 3 else set()
            elif is_atomic:
                self.rd = allr
                if 'sc0' in self.mods.split() :
                    self.wr = R[0]
            elif lds:
                self.rd = allr | {('m0', 0)}
            else:
                self.wr = R[0]; self.rd = set().union(*R[1:])
        elif op.startswith('ds_'):
            self.kind = 'ds'
            if op.startswith('ds_read') or op.startswith('ds_bpermute') or op.startswith('ds_permute') or op.startswith('ds_swizzle') or '_rtn' in op:
                self.wr = R[0]; self.rd = set().union(*R[1:]) if len(R) > 1 else set()
            else:
                self.rd = allr
        elif op.startswith('s_'):
            self.kind = 'salu'
            if op in ('s_nop', 's_waitcnt', 's_barrier', 's_endpgm', 's_branch', 's_sleep', 's_setprio') or op.startswith('s_cbranch') :
                pass
            elif op.startswith('s_cmp') or op.startswith('s_bitcmp'):
                self.rd = allr
            elif op.startswith('s_load') or op.startswith('s_buffer_load') or op.startswith('s_memtime') or op.startswith('s_memrealtime') or op.startswith('s_atomic'):
                self.kind = 'smem'
                self.wr = R[0]; self.rd = set().union(*R[1:]) if len(R) > 1 else set()
            else:
                self.wr = R[0] if R else set(); self.rd = set().union(*R[1:]) if len(R) > 1 else set()
                if 'saveexec' in op:
                    self.wr |= {('exec', 0)}
        else:
            raise ValueError('unknown instr ' + text)

    def states(self):
        if self.kind == 'none':
            return 0
        if self.op == 's_nop':
            return int(self.ops[0], 0) + 1
        return 1


def vg(s):
    return {r for r in s if r[0] in ('v', 'a')}
def sg(s):
    return {r for r in s if r[0] in ('s', 'vcc')}


def required_gap(p, c):
    need = 0
    if p.kind == 'valu':
        pw = vg(p.wr); ps = sg(p.wr)
        if c.kind == 'valu':
            if c.dpp and pw & vg(c.rd): need = max(need, 2)
            if c.base in ('v_readlane_b32', 'v_readfirstlane_b32') and pw & vg(c.rd): need = max(need, 1)
            if c.base in ('v_permlane32_swap_b32', 'v_permlane16_swap_b32') and pw & vg(c.rd): need = max(need, 2)
            if p.trans and not c.trans and pw & vg(c.rd): need = max(need, 1)
            if ps & sg(c.rd):
                need = max(need, 2)
                if c.base in ('v_readlane_b32', 'v_writelane_b32'): need = max(need, 4)
            if ('exec', 0) in p.wr: need = max(need, 5 if c.dpp else 4)
            if 'sdwa' in p.op and pw & vg(c.rd | c.wr): need = max(need, 1)
        if c.kind == 'mfma':
            if pw & c.rd: need = max(need, 2)
            if ('exec', 0) in p.wr: need = max(need, 4)
            if p.trans and pw & c.rd: need = max(need, 2)
        if c.kind == 'vmem' and ps & sg(c.rd): need = max(need, 5)
        if c.kind in ('salu', 'smem') and ps & sg(c.rd): need = max(need, 1)
    if p.kind == 'mfma':
        P = p.passes
        raw = {2: 5, 4: 8, 8: 12, 16: 20}[P]
        ovl = {2: 4, 4: 6, 8: 10, 16: 18}[P]
        same = {2: 2, 4: 0, 8: 0, 16: 0}[P]
        war = {2: 1, 4: 3, 8: 7, 16: 15}[P]
        if c.kind == 'mfma':
            if p.wr & (c.srcA | c.srcB): need = max(need, raw)
            if p.wr & c.srcC:
                if p.wr == c.srcC and c.passes == P: need = max(need, same)
                else: need = max(need, ovl)
            elif p.wr & c.wr:
                need = max(need, ovl)
        elif c.kind in ('valu', 'vmem', 'ds'):
            if p.wr & (vg(c.rd) | vg(c.wr)): need = max(need, raw)
            if p.srcC & vg(c.wr): need = max(need, war)
    if p.kind == 'vmem' and getattr(p, 'wide_store', None):
        if p.wide_store & vg(c.wr):
            need = max(need, 2 if c.kind in ('valu', 'mfma') else 1)
    if p.kind == 'salu' and ('m0', 0) in p.wr:
        if c.kind == 'vmem' and getattr(c, 'lds_dma', False): need = max(need, 1)
    return need


class Asm:
    def __init__(self):
        self.lines = []
        self.uid = 0
    def __call__(self, s):
        for l in s.strip('\n').split('\n'):
            l = l.strip()
            if l:
                self.lines.append(l)
    def label(self, base='L'):
        self.uid += 1
        return f'{base}_{self.uid}'
    def finalize(self, verbose=False):
        out = []
        hist = []
        nnop = 0
        for l in self.lines:
            ins = Ins(l)
            if ins.kind == 'none':
                out.append(l)
                continue
            dist = 0
            pad = 0
            for p in reversed(hist):
                if dist >= 20:
                    break
                need = required_gap(p, ins)
                if need > dist:
                    pad = max(pad, need - dist)
                dist += p.states()
            while pad > 0:
                n = min(pad, 16)
                nop = Ins(f's_nop {n-1}')
                hist.append(nop); out.append(nop.text); nnop += 1
                pad -= n
            hist.append(ins)
            out.append(l)
        if verbose:
            print('hazard nops inserted:', nnop)
        return out
    def text(self):
        o = self.finalize()
        return '\n'.join((l if (l.endswith(':') or l.startswith('.')) else '    ' + l) for l in o) + '\n'


def kernel_block(label, body, vgpr, sgpr=102, accum=None, extra_dirs=()):
    if accum is None:
        accum = min(256, (vgpr + 3) // 4 * 4)
    t = f'.text\n.globl {label}\n.p2align 8\n.type {label},@function\n{label}:\n{body}'
    d = f'''.section .rodata,"a"
.p2align 6
.amdhsa_kernel {label}
  .amdhsa_next_free_vgpr {vgpr}
  .amdhsa_next_free_sgpr {sgpr}
  .amdhsa_accum_offset {accum}
  .amdhsa_group_segment_fixed_size 0
  .amdhsa_kernarg_size 96
  .amdhsa_user_sgpr_count 2
  .amdhsa_user_sgpr_kernarg_segment_ptr 1
  .amdhsa_system_sgpr_workgroup_id_x 1
  .amdhsa_float_denorm_mode_32 3
  .amdhsa_float_denorm_mode_16_64 3
''' + ''.join(f'  {x}\n' for x in extra_dirs) + '.end_amdhsa_kernel\n'
    return t, d


def file_text(launch_lines, kernels):
    s = HEADER_COMMENT
    s += '\n'.join(launch_lines) + '\n'
    s += '.amdgcn_target "amdgcn-amd-amdhsa--gfx950"\n'
    for t, d in kernels:
        s += t
    for t, d in kernels:
        s += d
    return s
```

```python
import sys
sys.path.insert(0, 'gen')
from common import *

MIMIC = True
KVFLAGS = ' nt'
WFLAGS = ''

def k1():
    a = Asm()
    vL, vOffK, vOffV, vOffQ = 'v1', 'v2', 'v3', 'v4'
    vT0, vT1, vT2, vT3 = 'v5', 'v6', 'v7', 'v8'
    vPq = 'v9'
    vM = ['v10', 'v11', 'v12', 'v13']
    vX = 16
    vS = 16
    AG = 32
    AP = [48, 52]
    OACC = 56
    QACC = 60
    W = 64; K = 128; V = 192
    L_QP, L_QW, L_OP, L_ML, L_YP = 0, 4096, 6144, 10240, 10496
    a(f'''
    s_cmp_ge_u32 s2, 256
    s_cbranch_scc1 K1_end
    s_load_dwordx4 s[4:7], s[0:1], 0
    s_load_dwordx4 s[8:11], s[0:1], 16
    s_load_dwordx2 s[12:13], s[0:1], 32
    s_load_dwordx2 s[14:15], s[0:1], 88
    v_lshrrev_b32 {vT0}, 6, v0
    v_and_b32 {vL}, 63, v0
    v_readfirstlane_b32 s3, {vT0}
    s_and_b32 s48, s2, 7
    s_lshl_b32 s16, s48, 2
    s_lshr_b32 s49, s2, 3
    s_and_b32 s48, s49, 3
    s_add_u32 s16, s16, s48          ; head
    s_lshr_b32 s49, s49, 2
    s_lshr_b32 s17, s49, 1           ; b
    s_and_b32 s18, s49, 1            ; split
    s_lshl_b32 s48, s17, 5
    s_add_u32 s48, s48, s16          ; bh
    s_lshl_b32 s19, s48, 1
    s_add_u32 s19, s19, s18
    s_lshl_b32 s50, s48, 20
    s_lshl_b32 s51, s18, 17
    s_add_u32 s50, s50, s51
    s_add_u32 s50, s50, {3072*256}
    v_lshrrev_b32 {vT0}, 4, {vL}     ; s
    v_and_b32 {vT1}, 15, {vL}        ; c
    v_lshlrev_b32 {vT2}, 4, {vT1}    ; c*16
    v_lshl_add_u32 {vOffV}, {vT0}, 10, {vT2}
    v_lshl_add_u32 {vOffQ}, {vT0}, 13, {vT2}
    v_and_b32 {vT2}, 3, {vL}
    v_lshlrev_b32 {vT2}, 4, {vT2}
    v_lshl_add_u32 {vT2}, {vT0}, 6, {vT2}
    v_bfe_u32 {vT3}, {vL}, 2, 2
    v_lshl_add_u32 {vOffK}, {vT3}, 8, {vT2}
    s_waitcnt lgkmcnt(0)
    ''')
    srd(a, 20, 's6', 's7', 131072, 's50')
    srd(a, 24, 's8', 's9', 131072, 's50')
    a('s_lshl_b32 s51, s16, 8')
    srd(a, 28, 's10', 's11', 511 * 8192 + 256, 's51')
    a('s_lshl_b32 s51, s16, 17')
    srd(a, 32, 's12', 's13', 131072, 's51')
    a('s_lshl_b32 s51, s17, 10')
    srd(a, 36, 's4', 's5', 1024, 's51')
    srd(a, 40, 's14', 's15', 0x100000)
    a(f'''
    v_lshlrev_b32 {vT2}, 4, {vL}
    buffer_load_dwordx4 {vr(vX)}, {vT2}, s[36:39], 0 offen
    s_lshl_b32 s51, s3, 6
    v_lshl_add_u32 {vT3}, {vT1}, 2, {vT0}
    v_add_u32 {vT3}, s51, {vT3}
    v_lshlrev_b32 {vT3}, 1, {vT3}
    buffer_load_ushort {vPq}, {vT3}, s[36:39], 0 offen
    s_lshl_b32 s52, s3, 19
    ''')
    for j in range(16):
        a(f'buffer_load_dwordx4 {vr(W+4*j)}, {vOffQ}, s[28:31], s52 offen{WFLAGS}')
        if j < 15: a('s_add_u32 s52, s52, 32768')
    a('s_lshl_b32 s44, s3, 14')
    for T in range(1, 4):
        a(f's_add_u32 s{44+T}, s44, {4096*T}')
    for i in range(16):
        a(f'buffer_load_dwordx4 {vr(K+4*i)}, {vOffK}, s[20:23], s{44+(i>>2)} offen offset:{(i&3)*1024}{KVFLAGS}')
    a(f'''
    v_and_b32 {vT0}, 7, {vL}
    v_and_b32 {vT1}, 1, {vT0}
    v_lshrrev_b32 {vT0}, 1, {vT0}
    v_lshlrev_b32 {vT1}, 4, {vT1}
    v_mov_b32 {vT2}, 0xffff
    v_lshlrev_b32 {vT2}, {vT1}, {vT2}
    ''')
    for r in range(4):
        a(f'v_cmp_eq_u32 vcc, {r}, {vT0}')
        a(f'v_cndmask_b32 {vM[r]}, 0, {vT2}, vcc')
    a('s_waitcnt vmcnt(32)')
    e = [f'v{20+i}' for i in range(8)]
    for i in range(4):
        a(f'v_lshlrev_b32 {e[2*i]}, 16, v{vX+i}')
        a(f'v_and_b32 {e[2*i+1]}, 0xffff0000, v{vX+i}')
    a(f'v_add_f32 {vT0}, {e[0]}, {e[1]}')
    for i in range(2, 8):
        a(f'v_add_f32 {vT0}, {vT0}, {e[i]}')
    row_allreduce(a, 'v_add_f32', vT0)
    cross_allreduce(a, 'v_add_f32', vT0, vT1)
    a(f'v_mul_f32 {vT0}, {fhex(1/512)}, {vT0}')
    for i in range(8):
        a(f'v_sub_f32 {e[i]}, {e[i]}, {vT0}')
    a(f'v_mul_f32 {vT2}, {e[0]}, {e[0]}')
    for i in range(1, 8):
        a(f'v_fmac_f32 {vT2}, {e[i]}, {e[i]}')
    row_allreduce(a, 'v_add_f32', vT2)
    cross_allreduce(a, 'v_add_f32', vT2, vT1)
    a(f'v_mul_f32 {vT2}, {fhex(1/512)}, {vT2}')
    rbf16(a, vT0, vT0)
    rbf16(a, vT2, vT2)
    a(f'v_add_f32 {vT2}, {fhex(1e-5)}, {vT2}')
    rbf16(a, vT2, vT2)
    a(f'v_sqrt_f32 {vT2}, {vT2}')
    rbf16(a, vT2, vT2)
    a(f'v_rcp_f32 {vT2}, {vT2}')
    a(f'v_lshlrev_b32 {vPq}, 16, {vPq}')
    a(f'v_sub_f32 {vPq}, {vPq}, {vT0}')
    rbf16(a, vPq, vPq)
    a(f'v_mul_f32 {vPq}, {vPq}, {vT2}')
    a(f'v_cvt_pk_bf16_f32 {vPq}, {vPq}, {vPq}')
    for r in range(4):
        a(f'v_mov_b32 v{QACC+r}, 0')
    def selA(P, j, dst):
        for r in range(4):
            a(f'v_and_b32_dpp v{dst+r}, {P}, {vM[r]} row_newbcast:{j} {DPPALL}')
    selA(vPq, 0, AP[0])
    for j in range(16):
        if j < 15: selA(vPq, j+1, AP[(j+1) & 1])
        a(f's_waitcnt vmcnt({16 + 15 - j})')
        a(f'v_mfma_f32_16x16x32_bf16 {vr(QACC)}, {vr(AP[j&1])}, {vr(W+4*j)}, {vr(QACC)}')
    a(f'''
    v_and_b32 {vT0}, 15, {vL}
    v_lshrrev_b32 {vT1}, 4, {vL}
    v_lshlrev_b32 {vT0}, 5, {vT0}
    v_lshl_add_u32 {vT0}, {vT1}, 4, {vT0}       ; n*32+g*16
    s_lshl_b32 s51, s3, 9
    v_add_u32 v14, s51, {vT0}
    s_mov_b32 exec_hi, 0
    ds_write_b128 v14, {vr(QACC)} offset:{L_QP}
    s_mov_b32 exec_hi, -1
    ''')
    for i in range(16):
        a(f'buffer_load_dwordx4 {vr(V+4*i)}, {vOffV}, s[24:27], s{44+(i>>2)} offen offset:{(i&3)*256}{KVFLAGS}')
    a('s_waitcnt lgkmcnt(0)')
    a('s_barrier')
    a(f'v_lshlrev_b32 {vT0}, 3, {vL}')
    for w in range(8):
        a(f'ds_read_b64 v[{16+2*w}:{17+2*w}], {vT0} offset:{L_QP + w*512}')
    a('s_waitcnt lgkmcnt(0)')
    for w in range(1, 8):
        a(f'v_add_f32 v16, v16, v{16+2*w}')
        a(f'v_add_f32 v17, v17, v{17+2*w}')
    a(f'v_cvt_pk_bf16_f32 v16, v16, v17')
    a(f'''
    s_lshl_b32 s51, s3, 8
    v_lshlrev_b32 {vT0}, 2, {vL}
    v_add_u32 {vT0}, s51, {vT0}
    ds_write_b32 {vT0}, v16 offset:{L_QW}
    v_lshrrev_b32 {vT1}, 4, {vL}
    v_and_b32 {vT2}, 3, {vL}
    v_lshl_add_u32 {vT1}, {vT1}, 2, {vT2}
    v_lshlrev_b32 {vT1}, 4, {vT1}
    v_add_u32 {vT1}, s51, {vT1}
    s_waitcnt lgkmcnt(0)
    ds_read_b128 v[16:19], {vT1} offset:{L_QW}
    v_bfe_u32 {vT2}, {vL}, 2, 2          ; m>>2
    s_waitcnt lgkmcnt(0)
    ''')
    for g in range(4):
        a(f'v_cmp_eq_u32 vcc, {g}, {vT2}')
        for r in range(4):
            a(f'v_cndmask_b32 v{AG+4*g+r}, 0, v{16+r}, vcc')
    a('s_waitcnt vmcnt(16)')
    for T in range(4):
        for r in range(4):
            a(f'v_mov_b32 v{vS+4*T+r}, 0')
    for g in range(4):
        for T in range(4):
            a(f'v_mfma_f32_16x16x32_bf16 {vr(vS+4*T)}, {vr(AG+4*g)}, {vr(K+16*T+4*g)}, {vr(vS+4*T)}')
    a(f'v_and_b32 {vT0}, 3, {vL}')
    sc = [f'v{vS+4*T}' for T in range(4)]
    for r in range(1, 4):
        a(f'v_cmp_eq_u32 vcc, {r}, {vT0}')
        for T in range(4):
            a(f'v_cndmask_b32 {sc[T]}, {sc[T]}, v{vS+4*T+r}, vcc')
    for T in range(4):
        a(f'v_add_f32_dpp {sc[T]}, {sc[T]}, {sc[T]} quad_perm:[1,0,3,2] {DPPALL}')
    for T in range(4):
        a(f'v_add_f32_dpp {sc[T]}, {sc[T]}, {sc[T]} quad_perm:[2,3,0,1] {DPPALL}')
    SCALE = 128 ** -0.5
    if MIMIC:
        for T in range(4): rbf16(a, sc[T], sc[T])
        for T in range(4): a(f'v_mul_f32 {sc[T]}, {fhex(SCALE)}, {sc[T]}')
        for T in range(4): rbf16(a, sc[T], sc[T])
        for T in range(4): a(f'v_mul_f32 {sc[T]}, {fhex(LOG2E)}, {sc[T]}')
    else:
        for T in range(4): a(f'v_mul_f32 {sc[T]}, {fhex(SCALE*LOG2E)}, {sc[T]}')
    vMx, vLs = 'v14x', None
    vMx = 'v15'
    a(f'v_max_f32 {vT0}, {sc[0]}, {sc[1]}')
    a(f'v_max3_f32 {vMx}, {sc[2]}, {sc[3]}, {vT0}')
    row_allreduce(a, 'v_max_f32', vMx, steps=(8, 4))
    cross_allreduce(a, 'v_max_f32', vMx, vT1)
    pk = [f'v{vS+4*T+1}' for T in range(4)]
    for T in range(4): a(f'v_sub_f32 {sc[T]}, {sc[T]}, {vMx}')
    for T in range(4): a(f'v_exp_f32 {sc[T]}, {sc[T]}')
    for T in range(4): a(f'v_cvt_pk_bf16_f32 {pk[T]}, {sc[T]}, {sc[T]}')
    for T in range(4): a(f'v_and_b32 {sc[T]}, 0xffff0000, {pk[T]}')
    a(f'v_add_f32 {vT2}, {sc[0]}, {sc[1]}')
    a(f'v_add_f32 {vT3}, {sc[2]}, {sc[3]}')
    a(f'v_add_f32 {vT2}, {vT2}, {vT3}')
    row_allreduce(a, 'v_add_f32', vT2, steps=(8, 4))
    cross_allreduce(a, 'v_add_f32', vT2, vT1)
    a(f'''
    s_lshr_b32 s51, s3, 2
    s_lshl_b32 s51, s51, 16
    s_and_b32 s52, s3, 3
    s_lshl_b32 s52, s52, 8
    s_add_u32 s52, s52, s51
    ''')
    for j in range(16):
        a(f'buffer_load_dwordx4 {vr(W+4*j)}, {vOffV}, s[32:35], s52 offen{WFLAGS}')
        if j < 15: a('s_add_u32 s52, s52, 4096')
    for r in range(4):
        a(f'v_mov_b32 v{OACC+r}, 0')
    selA(pk[0], 0, AP[0])
    for i in range(16):
        if i < 15: selA(pk[(i+1) >> 2], 4 * ((i+1) & 3), AP[(i+1) & 1])
        a(f's_waitcnt vmcnt({16 + 15 - i})')
        a(f'v_mfma_f32_16x16x32_bf16 {vr(OACC)}, {vr(AP[i&1])}, {vr(V+4*i)}, {vr(OACC)}')
    a(f'''
    v_mov_b32 v16, {vMx}
    v_mov_b32 v17, {vT2}
    s_lshl_b32 s51, s3, 3
    v_mov_b32 {vT0}, s51
    s_mov_b32 exec_hi, 0
    ds_write_b128 v14, {vr(OACC)} offset:{L_OP}
    s_mov_b32 exec_lo, 1
    ds_write_b64 {vT0}, v[16:17] offset:{L_ML}
    s_mov_b64 exec, -1
    s_waitcnt lgkmcnt(0)
    s_barrier
    ; merge
    v_and_b32 {vT0}, 7, {vL}
    v_lshlrev_b32 {vT0}, 3, {vT0}
    ds_read_b64 v[16:17], {vT0} offset:{L_ML}
    s_lshr_b32 s51, s3, 2
    s_lshl_b32 s51, s51, 8
    v_and_b32 {vT1}, 15, {vL}
    v_lshrrev_b32 {vT2}, 4, {vL}
    v_lshl_add_u32 {vT1}, {vT1}, 2, {vT2}
    v_lshlrev_b32 {vT1}, 2, {vT1}
    v_add_u32 {vT1}, s51, {vT1}
    ''')
    for w in range(8):
        a(f'ds_read_b32 v{20+w}, {vT1} offset:{L_OP + 512*w}')
    a('s_waitcnt lgkmcnt(8)')
    a(f'v_mov_b32 v18, v16')
    row_allreduce(a, 'v_max_f32', 'v18', steps=(4, 2, 1))
    a(f'v_sub_f32 v16, v16, v18')
    a(f'v_exp_f32 v16, v16')
    a(f'v_mul_f32 v17, v17, v16')
    a(f'v_mov_b32 v19, v17')
    row_allreduce(a, 'v_add_f32', 'v19', steps=(4, 2, 1))
    a(f'v_rcp_f32 {vT0}, v19')
    a(f'v_mul_f32 v16, v16, {vT0}')
    a('s_waitcnt lgkmcnt(0)')
    a(f'v_mov_b32 {vT1}, 0')
    for w in range(8):
        a(f'v_fmac_f32_dpp {vT1}, v16, v{20+w} row_newbcast:{w} {DPPALL}')
    a(f'v_cvt_pk_bf16_f32 {vPq}, {vT1}, {vT1}')
    for r in range(4):
        a(f'v_mov_b32 v{QACC+r}, 0')
    selA(vPq, 0, AP[0])
    for j in range(16):
        if j < 15: selA(vPq, j+1, AP[(j+1) & 1])
        a(f's_waitcnt vmcnt({15 - j})')
        a(f'v_mfma_f32_16x16x32_bf16 {vr(QACC)}, {vr(AP[j&1])}, {vr(W+4*j)}, {vr(QACC)}')
    a(f'''
    v_and_b32 {vT0}, 15, {vL}
    v_lshrrev_b32 {vT1}, 4, {vL}
    v_lshlrev_b32 {vT0}, 5, {vT0}
    v_lshl_add_u32 {vT0}, {vT1}, 4, {vT0}
    s_and_b32 s51, s3, 3
    s_lshl_b32 s51, s51, 9
    v_add_u32 {vT0}, s51, {vT0}
    s_mov_b32 exec_hi, 0
    s_cmp_lt_u32 s3, 4
    s_cbranch_scc1 K1_lo
    ds_write_b128 {vT0}, {vr(QACC)} offset:{L_YP}
    s_waitcnt lgkmcnt(0)
    s_barrier
    s_endpgm
    K1_lo:
    s_barrier
    ds_read_b128 v[20:23], {vT0} offset:{L_YP}
    s_lshl_b32 s51, s19, 11
    s_waitcnt lgkmcnt(0)
    ''')
    for r in range(4):
        a(f'v_add_f32 v{20+r}, v{20+r}, v{QACC+r}')
    a(f'buffer_store_dwordx4 v[20:23], {vT0}, s[40:43], s51 offen offset:{WS_YP}')
    a(f'''
    s_cmp_lg_u32 s3, 0
    s_cbranch_scc1 K1_end
    s_lshl_b32 s51, s19, 3
    s_add_u32 s51, s51, {WS_ML}
    v_mov_b32 v16, v18
    v_mov_b32 v17, v19
    v_mov_b32 {vT0}, 0
    s_mov_b32 exec_lo, 1
    buffer_store_dwordx2 v[16:17], {vT0}, s[40:43], s51 offen
    K1_end:
    s_endpgm
    ''')
    return kernel_block('k1_kernel', a.text(), vgpr=256, sgpr=64), L_YP + 2048


def k2():
    a = Asm()
    a(f'''
    s_cmp_ge_u32 s2, 64
    s_cbranch_scc1 K2_end
    s_load_dwordx2 s[4:5], s[0:1], 0
    s_load_dwordx2 s[14:15], s[0:1], 88
    s_lshr_b32 s17, s2, 4        ; b
    s_and_b32 s18, s2, 15        ; slice
    v_lshrrev_b32 v1, 3, v0      ; pp
    v_and_b32 v2, 7, v0          ; c4
    s_waitcnt lgkmcnt(0)
    ''')
    srd(a, 40, 's14', 's15', 0x100000)
    a('s_lshl_b32 s51, s17, 10')
    srd(a, 36, 's4', 's5', 1024, 's51')
    a(f'''
    s_lshl_b32 s20, s17, 9
    s_add_u32 s20, s20, {WS_ML}
    v_lshlrev_b32 v3, 3, v0
    buffer_load_dwordx2 v[4:5], v3, s[40:43], s20 offen
    s_lshl_b32 s21, s17, 17
    s_lshl_b32 s22, s18, 7
    s_add_u32 s21, s21, s22
    v_lshlrev_b32 v3, 11, v1
    v_lshl_add_u32 v3, v2, 4, v3
    ''')
    for i in range(8):
        a(f'buffer_load_dwordx4 {vr(16+4*i)}, v3, s[40:43], s21 offen')
        if i < 7: a('s_add_u32 s21, s21, 16384')
    a(f'''
    s_lshl_b32 s22, s18, 6
    v_lshlrev_b32 v6, 3, v2
    buffer_load_dwordx2 v[8:9], v6, s[36:39], s22 offen
    s_waitcnt vmcnt(9)
    v_max_f32_dpp v6, v4, v4 quad_perm:[1,0,3,2] {DPPALL}
    v_sub_f32 v4, v4, v6
    v_exp_f32 v4, v4
    v_mul_f32 v4, v4, v5
    v_add_f32_dpp v6, v4, v4 quad_perm:[1,0,3,2] {DPPALL}
    v_rcp_f32 v6, v6
    v_mul_f32 v4, v4, v6
    v_lshlrev_b32 v7, 2, v1
    ''')
    for i in range(8):
        a(f'ds_bpermute_b32 v{48+i}, v7, v4 offset:{32*i}')
    for r in range(4):
        a(f'v_mov_b32 v{10+r}, 0')
    a('s_waitcnt lgkmcnt(0)')
    for i in range(8):
        a(f's_waitcnt vmcnt({8 - i})')
        for r in range(4):
            a(f'v_fmac_f32 v{10+r}, v{48+i}, v{16+4*i+r}')
    for r in range(4):
        a(f'v_add_f32_dpp v{10+r}, v{10+r}, v{10+r} row_ror:8 {DPPALL}')
    for r in range(4):
        cross_allreduce(a, 'v_add_f32', f'v{10+r}', f'v{14}')
    a('s_waitcnt vmcnt(0)')
    a('''
    v_lshlrev_b32 v16, 16, v8
    v_and_b32 v17, 0xffff0000, v8
    v_lshlrev_b32 v18, 16, v9
    v_and_b32 v19, 0xffff0000, v9
    ''')
    for r in range(4):
        rbf16(a, f'v{10+r}', f'v{10+r}')
        a(f'v_add_f32 v{10+r}, v{10+r}, v{16+r}')
    a('''
    v_cvt_pk_bf16_f32 v20, v10, v11
    v_cvt_pk_bf16_f32 v21, v12, v13
    v_lshlrev_b32 v10, 16, v20
    v_and_b32 v11, 0xffff0000, v20
    v_lshlrev_b32 v12, 16, v21
    v_and_b32 v13, 0xffff0000, v21
    v_add_f32 v14, v10, v11
    v_add_f32 v15, v12, v13
    v_add_f32 v22, v14, v15
    ''')
    row_allreduce(a, 'v_add_f32', 'v22', steps=(4, 2, 1))
    a(f'v_mul_f32 v14, {fhex(1/32)}, v22')
    for r in range(4):
        a(f'v_sub_f32 v{10+r}, v{10+r}, v14')
    a('v_mul_f32 v23, v10, v10')
    for r in range(1, 4):
        a(f'v_fmac_f32 v23, v{10+r}, v{10+r}')
    row_allreduce(a, 'v_add_f32', 'v23', steps=(4, 2, 1))
    a(f'''
    s_lshl_b32 s21, s17, 10
    s_lshl_b32 s22, s18, 6
    s_add_u32 s21, s21, s22
    s_add_u32 s21, s21, {WS_H}
    v_lshlrev_b32 v6, 3, v2
    s_mov_b32 exec_hi, 0
    s_mov_b32 exec_lo, 0xff
    buffer_store_dwordx2 v[20:21], v6, s[40:43], s21 offen
    s_lshl_b32 s21, s2, 3
    s_add_u32 s21, s21, {WS_ST}
    s_mov_b32 exec_lo, 1
    buffer_store_dwordx2 v[22:23], v6, s[40:43], s21 offen
    K2_end:
    s_endpgm
    ''')
    return kernel_block('k2_kernel', a.text(), vgpr=64, sgpr=64), 0


def k3():
    a = Asm()
    vL = 'v1'
    WG, WU, WD = 16, 24, 32
    HB = 40
    GA, UA = 48, 52
    CG, CU = 56, 60
    L_P, L_C = 0, 4096
    a(f'''
    s_cmp_ge_u32 s2, {NFF}
    s_cbranch_scc1 K3_end
    s_load_dwordx4 s[4:7], s[0:1], 48
    s_load_dwordx2 s[8:9], s[0:1], 64
    s_load_dwordx2 s[14:15], s[0:1], 88
    v_lshrrev_b32 v2, 6, v0
    v_and_b32 {vL}, 63, v0
    v_readfirstlane_b32 s3, v2
    v_lshrrev_b32 v2, 4, {vL}       ; s / g
    v_and_b32 v3, 15, {vL}          ; m / n'
    s_waitcnt lgkmcnt(0)
    ''')
    srd(a, 20, 's4', 's5', 512 * 2752)
    srd(a, 24, 's6', 's7', 512 * 2752)
    srd(a, 28, 's8', 's9', 1376 * 1024)
    srd(a, 40, 's14', 's15', 0x200000)
    L_WG, L_WU, L_WD = 8192, 8192 + 16384, 8192 + 32768
    a(f'''
    v_lshrrev_b32 v4, 1, {vL}
    v_mul_u32_u24 v4, 2752, v4
    v_and_b32 v5, 1, {vL}
    v_lshl_add_u32 v4, v5, 4, v4        ; (l>>1)*2752 + (l&1)*16
    s_mul_i32 s44, s3, {64*2752}
    s_lshl_b32 s45, s2, 5
    s_add_u32 s44, s44, s45
    s_add_u32 s46, s44, {32*2752}
    s_lshl_b32 s47, s3, 11
    s_add_u32 m0, s47, {L_WG}
    buffer_load_dwordx4 v4, s[20:23], s44 offen lds
    s_add_u32 m0, s47, {L_WG+1024}
    buffer_load_dwordx4 v4, s[20:23], s46 offen lds
    s_add_u32 m0, s47, {L_WU}
    buffer_load_dwordx4 v4, s[24:27], s44 offen lds
    s_add_u32 m0, s47, {L_WU+1024}
    buffer_load_dwordx4 v4, s[24:27], s46 offen lds
    v_lshrrev_b32 v5, 3, {vL}
    v_and_b32 v6, 7, {vL}
    v_lshlrev_b32 v6, 4, v6
    v_lshl_add_u32 v5, v5, 10, v6       ; (l>>3)*1024 + (l&7)*16
    s_lshl_b32 s44, s2, 14
    s_lshl_b32 s45, s3, 7
    s_add_u32 s44, s44, s45
    s_add_u32 s46, s44, 8192
    s_add_u32 m0, s47, {L_WD}
    buffer_load_dwordx4 v5, s[28:31], s44 offen lds
    s_add_u32 m0, s47, {L_WD+1024}
    buffer_load_dwordx4 v5, s[28:31], s46 offen lds
    v_lshlrev_b32 v4, 8, v2
    v_lshl_add_u32 v4, v3, 3, v4
    v_add_u32 v4, s47, v4
    v_lshrrev_b32 v5, 2, v3             ; r
    v_lshl_add_u32 v5, v2, 2, v5        ; 4s + r
    v_lshlrev_b32 v5, 7, v5
    v_and_b32 v6, 3, v3
    v_lshl_add_u32 v5, v6, 3, v5
    v_add_u32 v5, s47, v5
    s_waitcnt vmcnt(0)
    ''')
    for ii in range(2):
        for hh in range(2):
            a(f'ds_read_b64_tr_b16 v[{WG+4*ii+2*hh}:{WG+4*ii+2*hh+1}], v4 offset:{L_WG + ii*1024 + hh*128}')
            a(f'ds_read_b64_tr_b16 v[{WU+4*ii+2*hh}:{WU+4*ii+2*hh+1}], v4 offset:{L_WU + ii*1024 + hh*128}')
    for u in range(4):
        a(f'ds_read_b64_tr_b16 v[{WD+2*u}:{WD+2*u+1}], v5 offset:{L_WD + u*32}')
    a('s_waitcnt lgkmcnt(0)')
    a('v_mov_b32 v8, 0x3f803f80')
    for r in range(1, 4): a(f'v_mov_b32 v{8+r}, v8')
    for r in range(4):
        a(f'v_mov_b32 v{CG+r}, 0')
        a(f'v_mov_b32 v{CU+r}, 0')
    for ii in range(2):
        a(f'v_mfma_f32_16x16x32_bf16 {vr(CG)}, {vr(WG+4*ii)}, v[8:11], {vr(CG)}')
        a(f'v_mfma_f32_16x16x32_bf16 {vr(CU)}, {vr(WU+4*ii)}, v[8:11], {vr(CU)}')
    a(f'''
    v_and_b32 v6, 3, v3            ; b
    v_lshrrev_b32 v7, 2, v3        ; u'
    v_lshl_add_u32 v12, v2, 2, v6  ; g*4+b
    v_lshlrev_b32 v12, 5, v12      ; *32 bytes
    s_lshl_b32 s45, s3, 9
    v_add_u32 v13, s45, v12
    v_lshl_add_u32 v14, v7, 10, v12
    v_cmp_gt_u32 vcc, 4, v3
    s_and_saveexec_b64 s[48:49], vcc
    ds_write_b128 v13, {vr(CG)} offset:{L_C}
    ds_write_b128 v13, {vr(CU)} offset:{L_C+16}
    s_mov_b64 exec, s[48:49]
    s_waitcnt lgkmcnt(0)
    s_barrier
    ds_read_b128 v[64:67], v14 offset:{L_C}
    ds_read_b128 v[68:71], v14 offset:{L_C+16}
    ds_read_b128 v[72:75], v14 offset:{L_C+512}
    ds_read_b128 v[76:79], v14 offset:{L_C+512+16}
    s_waitcnt lgkmcnt(0)
    ''')
    for r in range(4):
        a(f'v_add_f32 v{CG+r}, v{64+r}, v{72+r}')
        a(f'v_add_f32 v{CU+r}, v{68+r}, v{76+r}')
    def red_u(base):
        for n in (4, 8):
            for r in range(4):
                a(f'v_add_f32_dpp v{base+r}, v{base+r}, v{base+r} row_ror:{n} {DPPALL}')
    red_u(CG); red_u(CU)
    for u in range(4):
        a(f'v_cmp_eq_u32 vcc, {u}, v7')
        a(f'v_cndmask_b32 v{80+u}, 0, -1, vcc')
    a(f'''
    v_lshlrev_b32 v15, 10, v6
    v_lshl_add_u32 v15, v2, 4, v15
    s_lshl_b32 s44, s3, 7
    s_add_u32 s44, s44, {WS_H}
    buffer_load_dwordx4 {vr(HB)}, v15, s[40:43], s44 offen
    buffer_load_dwordx4 {vr(HB+4)}, v15, s[40:43], s44 offen offset:64
    ; stats: (b*16 + 4g + u')*8
    v_lshlrev_b32 v15, 4, v6
    v_lshl_add_u32 v15, v2, 2, v15
    v_add_u32 v15, v15, v7
    v_lshlrev_b32 v15, 3, v15
    s_mov_b32 s44, {WS_ST}
    buffer_load_dwordx2 v[84:85], v15, s[40:43], s44 offen
    ''')
    for r in range(4):
        a(f'v_mov_b32 v{GA+r}, 0')
        a(f'v_mov_b32 v{UA+r}, 0')
    a('s_waitcnt vmcnt(1)')
    for ii in range(2):
        a(f'v_mfma_f32_16x16x32_bf16 {vr(GA)}, {vr(WG+4*ii)}, {vr(HB+4*ii)}, {vr(GA)}')
        a(f'v_mfma_f32_16x16x32_bf16 {vr(UA)}, {vr(WU+4*ii)}, {vr(HB+4*ii)}, {vr(UA)}')
    a(f'''
    v_cmp_gt_u32 vcc, 4, v3
    s_and_saveexec_b64 s[48:49], vcc
    ds_write_b128 v13, {vr(GA)} offset:{L_P}
    ds_write_b128 v13, {vr(UA)} offset:{L_P+16}
    s_mov_b64 exec, s[48:49]
    s_waitcnt vmcnt(0)
    v_mov_b32 v86, v84
    ''')
    row_allreduce(a, 'v_add_f32', 'v86', steps=(8, 4))
    cross_allreduce(a, 'v_add_f32', 'v86', 'v87')
    a(f'v_mul_f32 v86, {fhex(1/512)}, v86')
    a(f'v_mul_f32 v84, {fhex(1/32)}, v84')
    a('v_sub_f32 v84, v84, v86')
    a('v_mul_f32 v84, v84, v84')
    a(f'v_mov_b32 v88, {fhex(32.0)}')
    a('v_fmac_f32 v85, v88, v84')
    row_allreduce(a, 'v_add_f32', 'v85', steps=(8, 4))
    cross_allreduce(a, 'v_add_f32', 'v85', 'v87')
    a(f'v_mul_f32 v85, {fhex(1/512)}, v85')
    rbf16(a, 'v86', 'v86')
    rbf16(a, 'v85', 'v85')
    a(f'v_add_f32 v85, {fhex(1e-5)}, v85')
    rbf16(a, 'v85', 'v85')
    a('v_sqrt_f32 v85, v85')
    rbf16(a, 'v85', 'v85')
    a('v_rcp_f32 v85, v85')
    a('''
    s_waitcnt lgkmcnt(0)
    s_barrier
    ''')
    a(f'''
    ds_read_b128 v[64:67], v14 offset:{L_P}
    ds_read_b128 v[68:71], v14 offset:{L_P+16}
    ds_read_b128 v[72:75], v14 offset:{L_P+512}
    ds_read_b128 v[76:79], v14 offset:{L_P+512+16}
    s_waitcnt lgkmcnt(0)
    ''')
    for r in range(4):
        a(f'v_add_f32 v{GA+r}, v{64+r}, v{72+r}')
        a(f'v_add_f32 v{UA+r}, v{68+r}, v{76+r}')
    red_u(GA); red_u(UA)
    for r in range(4):
        a(f'v_fma_f32 v{GA+r}, -v86, v{CG+r}, v{GA+r}')
        a(f'v_fma_f32 v{UA+r}, -v86, v{CU+r}, v{UA+r}')
    for r in range(4):
        a(f'v_mul_f32 v{GA+r}, v85, v{GA+r}')
        a(f'v_mul_f32 v{UA+r}, v85, v{UA+r}')
    for r in range(4):
        rbf16(a, f'v{GA+r}', f'v{GA+r}')
        rbf16(a, f'v{UA+r}', f'v{UA+r}')
    for r in range(4):
        a(f'v_mul_f32 v{GA+r}, v{GA+r}, v{UA+r}')
    a(f'v_cvt_pk_bf16_f32 v64, v{GA}, v{GA+1}')
    a(f'v_cvt_pk_bf16_f32 v65, v{GA+2}, v{GA+3}')
    for u in range(4):
        a(f'v_and_b32 v{66+2*u}, v64, v{80+u}')
        a(f'v_and_b32 v{67+2*u}, v65, v{80+u}')
    for r in range(4):
        a(f'v_mov_b32 v{UA+r}, 0')
    for u in range(4):
        a(f'v_mfma_f32_16x16x16_bf16 {vr(UA)}, {vr(WD+2*u, 2)}, {vr(66+2*u, 2)}, {vr(UA)}')
    a(f'''
    v_lshlrev_b32 v15, 11, v6
    v_lshl_add_u32 v15, v7, 6, v15
    v_lshl_add_u32 v15, v2, 4, v15
    s_lshl_b32 s44, s2, 13
    s_lshl_b32 s45, s3, 8
    s_add_u32 s44, s44, s45
    s_add_u32 s44, s44, {WS_FP}
    buffer_store_dwordx4 {vr(UA)}, v15, s[40:43], s44 offen
    K3_end:
    s_endpgm
    ''')
    return kernel_block('k3_kernel', a.text(), vgpr=96, sgpr=64), 8192 + 49152


def k4():
    a = Asm()
    a(f'''
    s_cmp_ge_u32 s2, 64
    s_cbranch_scc1 K4_end
    s_load_dwordx2 s[4:5], s[0:1], 72
    s_load_dwordx2 s[14:15], s[0:1], 88
    s_lshr_b32 s17, s2, 4        ; b
    s_and_b32 s18, s2, 15        ; slice
    v_lshrrev_b32 v1, 3, v0      ; pp
    v_and_b32 v2, 7, v0          ; c4
    s_waitcnt lgkmcnt(0)
    ''')
    srd(a, 40, 's14', 's15', 0x200000)
    srd(a, 44, 's14', 's15', NFF * 8192, WS_FP)
    srd(a, 36, 's4', 's5', 4096)
    a(f'''
    s_lshl_b32 s21, s17, 11
    s_lshl_b32 s22, s18, 7
    s_add_u32 s21, s21, s22
    v_lshlrev_b32 v3, 13, v1
    v_lshl_add_u32 v3, v2, 4, v3
    ''')
    for i in range(11):
        a(f'buffer_load_dwordx4 {vr(16+4*i)}, v3, s[44:47], s21 offen')
        if i < 10: a('s_add_u32 s21, s21, 65536')
    a(f'''
    s_lshl_b32 s21, s17, 10
    s_lshl_b32 s22, s18, 6
    s_add_u32 s21, s21, s22
    s_add_u32 s23, s21, {WS_H}
    v_lshlrev_b32 v6, 3, v2
    buffer_load_dwordx2 v[8:9], v6, s[40:43], s23 offen
    s_waitcnt vmcnt(1)
    ''')
    for r in range(4):
        a(f'v_add_f32 v{10+r}, v{16+r}, v{20+r}')
    for i in range(2, 11):
        for r in range(4):
            a(f'v_add_f32 v{10+r}, v{10+r}, v{16+4*i+r}')
    for r in range(4):
        a(f'v_add_f32_dpp v{10+r}, v{10+r}, v{10+r} row_ror:8 {DPPALL}')
    for r in range(4):
        cross_allreduce(a, 'v_add_f32', f'v{10+r}', f'v{14}')
    a('s_waitcnt vmcnt(0)')
    a('''
    v_lshlrev_b32 v16, 16, v8
    v_and_b32 v17, 0xffff0000, v8
    v_lshlrev_b32 v18, 16, v9
    v_and_b32 v19, 0xffff0000, v9
    ''')
    for r in range(4):
        rbf16(a, f'v{10+r}', f'v{10+r}')
        a(f'v_add_f32 v{10+r}, v{10+r}, v{16+r}')
    a('''
    v_cvt_pk_bf16_f32 v20, v10, v11
    v_cvt_pk_bf16_f32 v21, v12, v13
    s_mov_b32 exec_hi, 0
    s_mov_b32 exec_lo, 0xff
    buffer_store_dwordx2 v[20:21], v6, s[36:39], s21 offen
    K4_end:
    s_endpgm
    ''')
    return kernel_block('k4_kernel', a.text(), vgpr=64, sgpr=64), 0


def main(out):
    (b1, l1), (b2, l2), (b3, l3), (b4, l4) = k1(), k2(), k3(), k4()
    launches = [
        f'; @launch kernel=k1_kernel grid=(256,1,1) block=(512,1,1) lds={l1}',
        f'; @launch kernel=k2_kernel grid=(64,1,1) block=(64,1,1) lds={l2}',
        f'; @launch kernel=k3_kernel grid=({NFF},1,1) block=(512,1,1) lds={l3}',
        f'; @launch kernel=k4_kernel grid=(64,1,1) block=(64,1,1) lds={l4}',
    ]
    open(out, 'w').write(file_text(launches, [b1, b2, b3, b4]))

if __name__ == '__main__':
    main(sys.argv[1])
```

```python
import re
NAME = 'sequential_preLN__sliding_block_cached__glu_gated_bilinear__decode'
HEADER_COMMENT = open('cdna_kernels/' + NAME + '.s.ref').read().split('; Override launch geometry')[0]

REG_RE = re.compile(r'^(-|\|)?(?:abs\()?([vas])(?:(\d+)|\[(\d+):(\d+)\])\)?\|?$')
TRANS = ('v_exp_f32', 'v_log_f32', 'v_rcp_f32', 'v_rsq_f32', 'v_sqrt_f32', 'v_sin_f32', 'v_cos_f32', 'v_rcp_iflag_f32')


def regs_of(tok):
    tok = tok.strip()
    if tok in ('vcc', 'vcc_lo', 'vcc_hi'):
        return {('vcc', 0)}
    if tok in ('exec', 'exec_lo', 'exec_hi'):
        return {('exec', 0)}
    if tok == 'm0':
        return {('m0', 0)}
    m = REG_RE.match(tok)
    if not m:
        return set()
    k = m.group(2)
    if m.group(3) is not None:
        return {(k, int(m.group(3)))}
    return {(k, i) for i in range(int(m.group(4)), int(m.group(5)) + 1)}


class Ins:
    def __init__(self, text):
        self.text = text
        t = text.split(';')[0].strip()
        self.is_label = t.endswith(':')
        self.is_dir = t.startswith('.')
        self.op = ''
        self.ops = []
        self.mods = ''
        if not t or self.is_label or self.is_dir:
            self.kind = 'none'
            return
        parts = t.split(None, 1)
        self.op = parts[0]
        rest = parts[1] if len(parts) > 1 else ''
        ops = []
        depth = 0
        cur = ''
        for ch in rest:
            if ch == '[':
                depth += 1
            if ch == ']':
                depth -= 1
            if ch == ',' and depth == 0:
                ops.append(cur.strip()); cur = ''
            else:
                cur += ch
        if cur.strip():
            ops.append(cur.strip())
        if ops:
            last = ops[-1].split()
            if last:
                ops[-1] = last[0]
                self.mods = ' '.join(last[1:])
        self.ops = ops
        op = self.op
        base = re.sub(r'_(e32|e64|dpp|sdwa)$', '', op)
        self.base = base
        self.dpp = op.endswith('_dpp') or 'row_' in self.mods or 'quad_perm' in self.mods or 'wave_' in self.mods
        self.wr = set(); self.rd = set()
        R = [regs_of(o) for o in ops]
        allr = set().union(*R) if R else set()
        if op.startswith('v_mfma') or op.startswith('v_smfmac'):
            self.kind = 'mfma'
            self.wr = R[0]; self.srcA = R[1]; self.srcB = R[2]; self.srcC = R[3]
            self.rd = R[1] | R[2] | R[3]
            if '16x16x32' in op or '16x16x16' in op or '16x16x64' in op:
                self.passes = 4
            elif '32x32x16' in op or '32x32x8' in op or '32x32x32' in op:
                self.passes = 8
            elif '4x4x4' in op:
                self.passes = 2
            else:
                self.passes = 16
            if '16x16x4_f32' in op or '32x32x2_f32' in op:
                raise NotImplementedError('sgemm mfma')
        elif op.startswith('v_'):
            self.kind = 'valu'
            if base in ('v_readlane_b32', 'v_readfirstlane_b32'):
                self.wr = R[0]; self.rd = set().union(*R[1:])
            elif base.startswith('v_cmp'):
                self.wr = R[0]; self.rd = set().union(*R[1:])
                if base.startswith('v_cmpx'):
                    self.wr |= {('exec', 0)}
            elif base in ('v_permlane32_swap_b32', 'v_permlane16_swap_b32', 'v_swap_b32'):
                self.wr = R[0] | R[1]; self.rd = R[0] | R[1]
            elif base in ('v_add_co_u32', 'v_sub_co_u32', 'v_subrev_co_u32', 'v_addc_co_u32', 'v_subb_co_u32', 'v_div_scale_f32', 'v_mad_u64_u32'):
                self.wr = R[0] | R[1]; self.rd = set().union(*R[2:])
            elif base == 'v_nop':
                pass
            else:
                self.wr = R[0]; self.rd = set().union(*R[1:]) if len(R) > 1 else set()
                if base in ('v_fmac_f32', 'v_dot2c_f32_bf16', 'v_writelane_b32', 'v_pk_fmac_f16', 'v_mac_f32') or self.dpp:
                    self.rd |= R[0]
                if base == 'v_cndmask_b32' and len(ops) == 3:
                    self.rd |= {('vcc', 0)}
                if base in ('v_div_fmas_f32',):
                    self.rd |= {('vcc', 0)}
            self.trans = base in TRANS
        elif op.startswith('buffer_') or op.startswith('global_') or op.startswith('flat_') or op.startswith('scratch_'):
            self.kind = 'vmem'
            is_store = '_store' in op
            is_atomic = '_atomic' in op
            lds = ('lds' in self.mods.split()) or '_lds_' in op
            self.lds_dma = lds
            if op in ('buffer_wbl2', 'buffer_inv'):
                pass
            elif is_store:
                self.rd = allr
                data = R[0] if op.startswith('buffer_') else R[1]
                self.wide_store = data if len(data) >= 3 else set()
            elif is_atomic:
                self.rd = allr
                if 'sc0' in self.mods.split() :
                    self.wr = R[0]
            elif lds:
                self.rd = allr | {('m0', 0)}
            else:
                self.wr = R[0]; self.rd = set().union(*R[1:])
        elif op.startswith('ds_'):
            self.kind = 'ds'
            if op.startswith('ds_read') or op.startswith('ds_bpermute') or op.startswith('ds_permute') or op.startswith('ds_swizzle') or '_rtn' in op:
                self.wr = R[0]; self.rd = set().union(*R[1:]) if len(R) > 1 else set()
            else:
                self.rd = allr
        elif op.startswith('s_'):
            self.kind = 'salu'
            if op in ('s_nop', 's_waitcnt', 's_barrier', 's_endpgm', 's_branch', 's_sleep', 's_setprio') or op.startswith('s_cbranch') :
                pass
            elif op.startswith('s_cmp') or op.startswith('s_bitcmp'):
                self.rd = allr
            elif op.startswith('s_load') or op.startswith('s_buffer_load') or op.startswith('s_memtime') or op.startswith('s_memrealtime') or op.startswith('s_atomic'):
                self.kind = 'smem'
                self.wr = R[0]; self.rd = set().union(*R[1:]) if len(R) > 1 else set()
            else:
                self.wr = R[0] if R else set(); self.rd = set().union(*R[1:]) if len(R) > 1 else set()
                if 'saveexec' in op:
                    self.wr |= {('exec', 0)}
        else:
            raise ValueError('unknown instr ' + text)

    def states(self):
        if self.kind == 'none':
            return 0
        if self.op == 's_nop':
            return int(self.ops[0], 0) + 1
        return 1


def vg(s):
    return {r for r in s if r[0] in ('v', 'a')}
def sg(s):
    return {r for r in s if r[0] in ('s', 'vcc')}


def required_gap(p, c):
    need = 0
    if p.kind == 'valu':
        pw = vg(p.wr); ps = sg(p.wr)
        if c.kind == 'valu':
            if c.dpp and pw & vg(c.rd): need = max(need, 2)
            if c.base in ('v_readlane_b32', 'v_readfirstlane_b32') and pw & vg(c.rd): need = max(need, 1)
            if c.base in ('v_permlane32_swap_b32', 'v_permlane16_swap_b32') and pw & vg(c.rd): need = max(need, 2)
            if p.trans and not c.trans and pw & vg(c.rd): need = max(need, 1)
            if ps & sg(c.rd):
                need = max(need, 2)
                if c.base in ('v_readlane_b32', 'v_writelane_b32'): need = max(need, 4)
            if ('exec', 0) in p.wr:
                if c.dpp: need = max(need, 5)
                elif c.base in ('v_readlane_b32', 'v_readfirstlane_b32', 'v_writelane_b32', 'v_permlane32_swap_b32', 'v_permlane16_swap_b32'): need = max(need, 4)
                elif ('exec', 0) in c.rd: need = max(need, 2)
            if 'sdwa' in p.op and pw & vg(c.rd | c.wr): need = max(need, 1)
        if p.base.startswith('v_dot'):
            if c.kind in ('valu', 'mfma', 'vmem', 'ds') and pw & (vg(c.rd) | vg(c.wr)):
                same_c = False
                if c.kind == 'valu' and c.base == p.base and len(c.ops) == 4:
                    ab = regs_of(c.ops[1]) | regs_of(c.ops[2])
                    same_c = not (pw & ab)
                if not same_c: need = max(need, 3)
        if c.kind == 'salu' and ('exec', 0) in p.wr and ('exec', 0) in c.rd: need = max(need, 1)
        if c.kind == 'mfma':
            if pw & c.rd: need = max(need, 2)
            if ('exec', 0) in p.wr: need = max(need, 4)
            if p.trans and pw & c.rd: need = max(need, 2)
        if c.kind == 'vmem' and ps & sg(c.rd): need = max(need, 5)
        if c.kind in ('salu', 'smem') and ps & sg(c.rd): need = max(need, 1)
    if p.kind == 'mfma':
        P = p.passes
        raw = {2: 5, 4: 8, 8: 12, 16: 20}[P]
        ovl = {2: 4, 4: 6, 8: 10, 16: 18}[P]
        same = {2: 2, 4: 0, 8: 0, 16: 0}[P]
        war = {2: 1, 4: 3, 8: 7, 16: 15}[P]
        if c.kind == 'mfma':
            if p.wr & (c.srcA | c.srcB): need = max(need, raw)
            if p.wr & c.srcC:
                if p.wr == c.srcC and c.passes == P: need = max(need, same)
                else: need = max(need, ovl)
            elif p.wr & c.wr:
                need = max(need, ovl)
        elif c.kind in ('valu', 'vmem', 'ds'):
            if p.wr & (vg(c.rd) | vg(c.wr)): need = max(need, raw)
            if p.srcC & vg(c.wr): need = max(need, war)
    if p.kind == 'vmem' and getattr(p, 'wide_store', None):
        if p.wide_store & vg(c.wr):
            need = max(need, 2 if c.kind in ('valu', 'mfma') else 1)
    if p.kind == 'salu' and ('m0', 0) in p.wr:
        if c.kind == 'vmem' and getattr(c, 'lds_dma', False): need = max(need, 1)
    return need


class Asm:
    def __init__(self):
        self.lines = []
        self.uid = 0
    def __call__(self, s):
        for l in s.strip('\n').split('\n'):
            l = l.strip()
            if l:
                self.lines.append(l)
    def label(self, base='L'):
        self.uid += 1
        return f'{base}_{self.uid}'
    def finalize(self, verbose=False):
        out = []
        hist = []
        nnop = 0
        for l in self.lines:
            ins = Ins(l)
            if ins.kind == 'none':
                out.append(l)
                continue
            dist = 0
            pad = 0
            for p in reversed(hist):
                if dist >= 20:
                    break
                need = required_gap(p, ins)
                if need > dist:
                    pad = max(pad, need - dist)
                dist += p.states()
            while pad > 0:
                n = min(pad, 16)
                nop = Ins(f's_nop {n-1}')
                hist.append(nop); out.append(nop.text); nnop += 1
                pad -= n
            hist.append(ins)
            out.append(l)
        if verbose:
            print('hazard nops inserted:', nnop)
        return out
    def text(self):
        o = self.finalize()
        return '\n'.join((l if (l.endswith(':') or l.startswith('.')) else '    ' + l) for l in o) + '\n'


def kernel_block(label, body, vgpr, sgpr=102, accum=None, extra_dirs=()):
    if accum is None:
        accum = min(256, (vgpr + 3) // 4 * 4)
    t = f'.text\n.globl {label}\n.p2align 8\n.type {label},@function\n{label}:\n{body}'
    d = f'''.section .rodata,"a"
.p2align 6
.amdhsa_kernel {label}
  .amdhsa_next_free_vgpr {vgpr}
  .amdhsa_next_free_sgpr {sgpr}
  .amdhsa_accum_offset {accum}
  .amdhsa_group_segment_fixed_size 0
  .amdhsa_kernarg_size 96
  .amdhsa_user_sgpr_count 2
  .amdhsa_user_sgpr_kernarg_segment_ptr 1
  .amdhsa_system_sgpr_workgroup_id_x 1
  .amdhsa_float_denorm_mode_32 3
  .amdhsa_float_denorm_mode_16_64 3
''' + ''.join(f'  {x}\n' for x in extra_dirs) + '.end_amdhsa_kernel\n'
    return t, d


def file_text(launch_lines, kernels):
    s = HEADER_COMMENT
    s += '\n'.join(launch_lines) + '\n'
    s += '.amdgcn_target "amdgcn-amd-amdhsa--gfx950"\n'
    for t, d in kernels:
        s += t
    for t, d in kernels:
        s += d
    return s
```

```python
import sys
sys.path.insert(0, 'gen')
from common import *

WS_EPOCH = 0x0
WS_Q = 0x1000
WS_O = 0x20000
WS_Y = 0x80000
WS_H = 0x100000
WS_HID = 0x120000
HID_REP = 0x6000
HID_B = 5632
WS_STAMP = 0x200000
WS_SIZE = 0x400000
NFF = 86

L_QP = 0
L_OP = 2048
L_ML = 6144
L_OB = 6208
L_FP = 8448
L_FS = 12544
L_FC = 12800
L_WO = 14336
L_WQ = 30720
L_FF = 30720
L_END = L_FF + 49152

SCALE = 128 ** -0.5
LIMIT = 40000


class Cfg:
    nT = (4, 4)
    nK0 = 6
    nV0 = 8
    kvf = ' nt'
    wf = ''
    HR = 8
    stamps = False
    stampmap = None
    def __init__(self, **kw):
        for k, v in kw.items():
            setattr(self, k, v)


def gen(cfg):
    a = Asm()
    sW, sH, sB, sSig, sJ, sTag, sX, sSlot = 's3', 's4', 's5', 's6', 's7', 's8', 's9', 's10'
    sCnt = 's11'
    S_K, S_V, S_WS, S_X, S_W1, S_W2 = 40, 44, 48, 52, 56, 16
    KM = [64, 66, 68, 70]
    TM = [72, 74, 76]
    sOnes = 's78'
    ST0 = 80
    vL, vOffK, vOffV = 'v1', 'v2', 'v3'
    t0, t1, t2, t3, t4, t5 = 'v4', 'v5', 'v6', 'v7', 'v8', 'v9'
    vS, vN = 'v10', 'v11'
    vM = ['v12', 'v13', 'v14', 'v15']
    KB, VB = 96, 176
    nstamp = [0]

    def km(u): return f's[{KM[u]}:{KM[u]+1}]'
    def tm(t): return f's[{TM[t-1]}:{TM[t-1]+1}]'

    def stamp(i):
        if cfg.stamps:
            if cfg.stampmap is not None:
                if i not in cfg.stampmap: return
                i = cfg.stampmap[i]
            elif i > 10:
                return
            a(f's_memrealtime s[{ST0+2*i}:{ST0+2*i+1}]')

    def dump_stamps():
        if not cfg.stamps:
            return
        a('s_waitcnt lgkmcnt(0)')
        a('s_mov_b64 exec, 1')
        a(f's_lshl_b32 s12, s2, 3')
        a(f's_add_u32 s12, s12, {sW}')
        a(f's_lshl_b32 s12, s12, 6')
        a(f's_add_u32 s12, s12, {WS_STAMP}')
        a('v_mov_b32 v4, 0')
        for q in range(3):
            for r in range(4):
                i = 4 * q + r
                if i < 11:
                    a(f'v_mov_b32 v{20+r}, s{ST0+2*i}')
                else:
                    a(f's_getreg_b32 s13, hwreg(HW_REG_XCC_ID)')
                    a(f'v_mov_b32 v{20+r}, s13')
            a(f'buffer_store_dwordx4 v[20:23], v4, s[{S_WS}:{S_WS+3}], s12 offen offset:{16*q}')
            a('s_waitcnt vmcnt(0)')

    def check(tags, exp='-1'):
        for tg in tags:
            a(f'v_cmpx_eq_u32 vcc, {sTag}, {tg}')
        a(f's_cmp_eq_u64 exec, {exp}')
        a(f's_mov_b64 exec, {exp}')

    def poll(loads, tags, exp='-1', name='P'):
        lp, dn = a.label(name + 'lp'), a.label(name + 'dn')
        a(f's_mov_b32 {sCnt}, {LIMIT}')
        a(f'{lp}:')
        a('s_nop 1')
        for l in loads:
            a(l)
        a('s_waitcnt vmcnt(0)')
        check(tags, exp)
        a(f's_cbranch_scc1 {dn}')
        a(f's_sub_u32 {sCnt}, {sCnt}, 1')
        a(f's_cmp_lg_u32 {sCnt}, 0')
        a(f's_cbranch_scc1 {lp}')
        a(f'{dn}:')
        a('s_nop 1')

    def red_u(base, n=4):
        for d in (4, 8):
            for r in range(n):
                a(f'v_add_f32_dpp v{base+r}, v{base+r}, v{base+r} row_ror:{d} {DPPALL}')

    a(f'''
    s_cmp_ge_u32 s2, 256
    s_cbranch_scc1 L_end
    s_load_dwordx16 s[16:31], s[0:1], 0
    s_load_dwordx8 s[32:39], s[0:1], 64
    ''')
    if cfg.stamps:
        for i in range(11):
            a(f's_mov_b32 s{ST0+2*i}, 0')
    stamp(0)
    a(f'''
    v_lshrrev_b32 {t0}, 6, v0
    v_and_b32 {vL}, 63, v0
    v_readfirstlane_b32 {sW}, {t0}
    s_and_b32 {sX}, s2, 7
    s_lshr_b32 {sSlot}, s2, 3
    s_and_b32 {sSig}, {sX}, 1
    s_lshr_b32 s12, {sX}, 1
    s_lshl_b32 {sH}, s12, 3
    s_and_b32 s12, {sSlot}, 7
    s_add_u32 {sH}, {sH}, s12
    s_lshr_b32 {sB}, {sSlot}, 3
    s_lshl_b32 {sJ}, {sSig}, 2
    s_add_u32 {sJ}, {sJ}, {sB}
    v_lshrrev_b32 {vS}, 4, {vL}
    v_and_b32 {vN}, 15, {vL}
    v_and_b32 {t0}, 3, {vL}
    v_lshlrev_b32 {t1}, 4, {t0}
    v_lshl_add_u32 {t1}, {vS}, 6, {t1}
    v_lshrrev_b32 {t2}, 2, {vN}          ; u = n>>2
    v_lshl_add_u32 {vOffK}, {t2}, 8, {t1}
    ; vOffV = s*1024 + n*16
    v_lshlrev_b32 {t1}, 4, {vN}
    v_lshl_add_u32 {vOffV}, {vS}, 10, {t1}
    v_lshl_add_u32 {t1}, {vS}, 2, {t2}
    v_lshlrev_b32 {t1}, 4, {t1}
    v_lshl_add_u32 {t3}, {t0}, 10, {t1}
    v_lshlrev_b32 {t1}, 3, {vS}
    v_lshl_add_u32 {t1}, {t2}, 5, {t1}
    v_lshl_add_u32 {t4}, {t0}, 10, {t1}
    v_lshrrev_b32 {t1}, 1, {vL}
    v_lshlrev_b32 {t1}, 13, {t1}
    v_and_b32 {t2}, 1, {vL}
    v_lshl_add_u32 {t5}, {t2}, 4, {t1}
    s_mov_b32 {sOnes}, 0x3f803f80
    ''')
    for u in range(4):
        a(f's_mov_b32 s{KM[u]}, {hex(0x000f000f << (4*u))}')
        a(f's_mov_b32 s{KM[u]+1}, {hex(0x000f000f << (4*u))}')
    for t in (1, 2, 3):
        a(f's_mov_b32 s{TM[t-1]}, {hex(0x11111111 << t)}')
        a(f's_mov_b32 s{TM[t-1]+1}, {hex(0x11111111 << t)}')
    nT0, nT1 = cfg.nT
    a(f'''
    s_lshl_b32 s12, {sB}, 5
    s_add_u32 s12, s12, {sH}          ; bh
    s_lshl_b32 s12, s12, 20
    s_mul_i32 s13, {sSig}, {nT0*128*256}
    s_add_u32 s12, s12, s13
    s_add_u32 s12, s12, {3072*256}
    s_lshl_b32 s13, {sH}, 8
    s_lshl_b32 s14, {sJ}, 5
    s_add_u32 s13, s13, s14
    s_waitcnt lgkmcnt(0)
    ''')
    srd(a, S_WS, 's38', 's39', WS_SIZE)
    srd(a, S_X, 's16', 's17', 4096)
    srd(a, S_W1, 's22', 's23', 511 * 8192 + 32, 's13')
    XS, XF, EP = 16, 32, 34
    a(f'''
    v_mov_b32 {t0}, 0
    buffer_load_dword v{EP}, {t0}, s[{S_WS}:{S_WS+3}], 0 offen sc1
    ''')
    for i in range(4):
        a(f'buffer_load_dwordx4 {vr(XS+4*i)}, {t3}, s[{S_X}:{S_X+3}], 0 offen offset:{256*i}')
    a(f'''
    s_lshl_b32 s14, {sW}, 7
    buffer_load_dwordx2 v[{XF}:{XF+1}], {t4}, s[{S_X}:{S_X+3}], s14 offen
    s_lshl_b32 s14, {sW}, 19
    s_lshl_b32 s15, {sW}, 11
    s_add_u32 m0, s15, {L_WQ}
    buffer_load_dwordx4 {t5}, s[{S_W1}:{S_W1+3}], s14 offen lds{cfg.wf}
    s_add_u32 s14, s14, {32*8192}
    s_add_u32 m0, s15, {L_WQ+1024}
    buffer_load_dwordx4 {t5}, s[{S_W1}:{S_W1+3}], s14 offen lds{cfg.wf}
    ''')
    maxT = max(nT0, nT1)
    srd(a, S_K, 's18', 's19', maxT * 128 * 256, 's12')
    srd(a, S_V, 's20', 's21', maxT * 128 * 256, 's12')

    def attention(nT):
        nL = 4 * nT
        sKV = 12
        soff = ['s12', 's13', 's14', 's15', 's79'][:nT]
        a(f's_mul_i32 s12, {sW}, {nT*4096}')
        for T in range(1, nT):
            a(f's_add_u32 {soff[T]}, s12, {4096*T}')
        def kload(i):
            a(f'buffer_load_dwordx4 {vr(KB+4*i)}, {vOffK}, s[{S_K}:{S_K+3}], {soff[i>>2]} offen offset:{(i&3)*1024}{cfg.kvf}')
        def vload(i):
            a(f'buffer_load_dwordx4 {vr(VB+4*i)}, {vOffV}, s[{S_V}:{S_V+3}], {soff[i>>2]} offen offset:{(i&3)*256}{cfg.kvf}')
        nK0 = min(cfg.nK0, nL)
        for i in range(nK0):
            kload(i)
        stamp(20)
        a(f's_waitcnt vmcnt({2 + nK0})')
        stamp(21)
        a(f'v_readfirstlane_b32 s62, v{EP}')
        sm, sq, sm2, sq2 = 'v36', 'v37', 'v38', 'v39'
        a(f'v_dot2_f32_bf16 {sm}, v{XS}, {sOnes}, 0')
        a(f'v_dot2_f32_bf16 {sq}, v{XS}, v{XS}, 0')
        a(f'v_dot2_f32_bf16 {sm2}, v{XS+1}, {sOnes}, 0')
        a(f'v_dot2_f32_bf16 {sq2}, v{XS+1}, v{XS+1}, 0')
        for i in range(2, 16, 2):
            a(f'v_dot2_f32_bf16 {sm}, v{XS+i}, {sOnes}, {sm}')
            a(f'v_dot2_f32_bf16 {sq}, v{XS+i}, v{XS+i}, {sq}')
            a(f'v_dot2_f32_bf16 {sm2}, v{XS+i+1}, {sOnes}, {sm2}')
            a(f'v_dot2_f32_bf16 {sq2}, v{XS+i+1}, v{XS+i+1}, {sq2}')
        a(f's_mul_i32 {sTag}, s62, 0x9E3779B1')
        a(f's_add_u32 {sTag}, {sTag}, 0x7F4A7C15')
        a(f'v_add_f32 {sm}, {sm}, {sm2}')
        a(f'v_add_f32 {sq}, {sq}, {sq2}')
        for d in (4, 8):
            a(f'v_add_f32_dpp {sm}, {sm}, {sm} row_ror:{d} {DPPALL}')
            a(f'v_add_f32_dpp {sq}, {sq}, {sq} row_ror:{d} {DPPALL}')
        cross_allreduce(a, 'v_add_f32', sm, sm2)
        cross_allreduce(a, 'v_add_f32', sq, sq2)
        ln_finish(sm, sq, sm2)
        e = ['v40', 'v41', 'v42', 'v43']
        a(f'v_lshlrev_b32 {e[0]}, 16, v{XF}')
        a(f'v_and_b32 {e[1]}, 0xffff0000, v{XF}')
        a(f'v_lshlrev_b32 {e[2]}, 16, v{XF+1}')
        a(f'v_and_b32 {e[3]}, 0xffff0000, v{XF+1}')
        for r in range(4): a(f'v_sub_f32 {e[r]}, {e[r]}, {sm}')
        a(f'v_cvt_pk_bf16_f32 v{XF}, {e[0]}, {e[1]}')
        a(f'v_cvt_pk_bf16_f32 v{XF+1}, {e[2]}, {e[3]}')
        a(f'v_lshlrev_b32 {e[0]}, 16, v{XF}')
        a(f'v_and_b32 {e[1]}, 0xffff0000, v{XF}')
        a(f'v_lshlrev_b32 {e[2]}, 16, v{XF+1}')
        a(f'v_and_b32 {e[3]}, 0xffff0000, v{XF+1}')
        for r in range(4): a(f'v_mul_f32 {e[r]}, {e[r]}, {sq}')
        a(f'v_cvt_pk_bf16_f32 v{XF}, {e[0]}, {e[1]}')
        a(f'v_cvt_pk_bf16_f32 v{XF+1}, {e[2]}, {e[3]}')
        BU = 44
        for u in range(4):
            a(f'v_cndmask_b32 v{BU+2*u}, 0, v{XF}, {km(u)}')
            a(f'v_cndmask_b32 v{BU+2*u+1}, 0, v{XF+1}, {km(u)}')
        AU = 16
        a(f's_lshl_b32 s62, {sW}, 11')
        a(f'v_lshl_add_u32 {t0}, {vL}, 3, s62')
        stamp(22)
        a(f's_waitcnt vmcnt({nK0})')
        stamp(23)
        for u in range(4):
            a(f'ds_read_b64_tr_b16 v[{AU+2*u}:{AU+2*u+1}], {t0} offset:{L_WQ + 512*u}')
        QD = 24
        a('s_waitcnt lgkmcnt(0)')
        for u in range(4):
            c = '0' if u == 0 else vr(QD)
            a(f'v_mfma_f32_16x16x16_bf16 {vr(QD)}, {vr(AU+2*u,2)}, {vr(BU+2*u,2)}, {c}')
        red_u(QD)
        a(f'''
        v_lshlrev_b32 {t0}, 6, {vN}
        v_lshl_add_u32 {t0}, {vS}, 4, {t0}
        s_lshl_b32 s62, {sW}, 8
        v_add_u32 {t0}, s62, {t0}
        s_mov_b64 exec, {km(0)}
        ds_write_b128 {t0}, {vr(QD)} offset:{L_QP}
        s_mov_b64 exec, -1
        s_waitcnt lgkmcnt(0)
        s_barrier
        ''')
        stamp(1)
        lq = a.label('Lq')
        a(f's_cmp_lg_u32 {sW}, 0')
        a(f's_cbranch_scc1 {lq}')
        a(f'''
        v_lshrrev_b32 {t0}, 5, {vL}
        v_and_b32 {t1}, 31, {vL}
        v_lshlrev_b32 {t2}, 3, {t1}
        v_lshl_add_u32 {t0}, {t0}, 10, {t2}
        ''')
        for i in range(4):
            a(f'ds_read_b64 v[{16+2*i}:{17+2*i}], {t0} offset:{L_QP + 256*i}')
        a(f'''
        v_lshrrev_b32 {t2}, 3, {t1}
        v_and_b32 {t3}, 7, {vL}
        v_lshlrev_b32 {t3}, 3, {t3}
        v_lshl_add_u32 {t2}, {t2}, 9, {t3}
        s_lshl_b32 s62, {sH}, 11
        s_lshl_b32 s63, {sJ}, 6
        s_add_u32 s62, s62, s63
        s_add_u32 s62, s62, {WS_Q}
        s_waitcnt lgkmcnt(0)
        v_add_f32 v16, v16, v18
        v_add_f32 v17, v17, v19
        v_add_f32 v20, v20, v22
        v_add_f32 v21, v21, v23
        v_add_f32 v16, v16, v20
        v_add_f32 v17, v17, v21
        ''')
        cross32(a, 'v16', 'v18'); cross32(a, 'v17', 'v19')
        a(f'''
        v_cvt_pk_bf16_f32 v16, v16, v17
        v_mov_b32 v17, {sTag}
        s_mov_b32 exec_hi, 0
        buffer_store_dwordx2 v[16:17], {t2}, s[{S_WS}:{S_WS+3}], s62 offen sc1
        s_mov_b32 exec_hi, -1
        {lq}:
        ''')
        for i in range(nK0, nL):
            kload(i)
        QR = 16
        a(f'''
        v_and_b32 {t0}, 3, {vL}
        v_lshl_add_u32 {t0}, {vS}, 2, {t0}
        v_lshlrev_b32 {t5}, 5, {t0}          ; (4s + (m&3))*32
        s_lshl_b32 s62, {sH}, 2
        s_add_u32 s62, s62, {sB}
        s_lshl_b32 s62, s62, 9
        s_add_u32 s63, s62, {WS_Q}
        ''')
        qloads = [f'buffer_load_dwordx4 {vr(QR)}, {t5}, s[{S_WS}:{S_WS+3}], s63 offen sc1',
                  f'buffer_load_dwordx4 {vr(QR+4)}, {t5}, s[{S_WS}:{S_WS+3}], s63 offen offset:16 sc1']
        stamp(24)
        for l in qloads: a(l)
        nV0 = min(cfg.nV0, nL)
        for i in range(nV0):
            vload(i)
        stamp(25)
        a(f'''
        v_and_b32 {t0}, 7, {vL}
        v_and_b32 {t1}, 1, {t0}
        v_lshrrev_b32 {t0}, 1, {t0}
        v_lshlrev_b32 {t1}, 4, {t1}
        v_mov_b32 {t2}, 0xffff
        v_lshlrev_b32 {t2}, {t1}, {t2}
        ''')
        for r in range(4):
            a(f'v_cmp_eq_u32 vcc, {r}, {t0}')
            a(f'v_cndmask_b32 {vM[r]}, 0, {t2}, vcc')
        qt = [f'v{QR+1}', f'v{QR+3}', f'v{QR+5}', f'v{QR+7}']
        qok = a.label('Lqok')
        a(f's_waitcnt vmcnt({nV0})')
        stamp(2)
        check(qt)
        a(f's_cbranch_scc1 {qok}')
        poll(qloads, qt, name='Q')
        a(f'{qok}:')
        a('s_nop 1')
        stamp(3)
        AG = 24
        qd = [QR, QR+2, QR+4, QR+6]
        for g in range(4):
            for r in range(4):
                a(f'v_cndmask_b32 v{AG+4*g+r}, 0, v{qd[r]}, {km(g)}')
        SC = 40
        for g in range(4):
            for T in range(nT):
                c = '0' if g == 0 else vr(SC+4*T)
                a(f'v_mfma_f32_16x16x32_bf16 {vr(SC+4*T)}, {vr(AG+4*g)}, {vr(KB+16*T+4*g)}, {c}')
        SQ = 60
        for T in range(nT):
            a(f'v_mov_b32_dpp v{SQ+T}, v{SC+4*T} quad_perm:[0,0,0,0] {DPPALL}')
        for t in (1, 2, 3):
            for T in range(nT):
                a(f'v_add_f32_dpp v{SQ+T}, v{SC+4*T+t}, v{SQ+T} quad_perm:[{t},{t},{t},{t}] {DPPALL}')
        ngrp = (nT + 3) // 4
        P = [65, 66]
        NEG = fhex(-1e30)
        for q in range(ngrp):
            cntq = min(4, nT - 4 * q)
            if cntq == 4:
                a(f'v_cndmask_b32 v{P[q]}, v{SQ+4*q}, v{SQ+4*q+1}, {tm(1)}')
                a(f'v_cndmask_b32 v{P[q]}, v{P[q]}, v{SQ+4*q+2}, {tm(2)}')
                a(f'v_cndmask_b32 v{P[q]}, v{P[q]}, v{SQ+4*q+3}, {tm(3)}')
            else:
                a(f'v_mov_b32 {t0}, {NEG}')
                srcs = [f'v{SQ+4*q+t}' if t < cntq else t0 for t in range(4)]
                a(f'v_cndmask_b32 v{P[q]}, {srcs[0]}, {srcs[1]}, {tm(1)}')
                a(f'v_cndmask_b32 v{P[q]}, v{P[q]}, {srcs[2]}, {tm(2)}')
                a(f'v_cndmask_b32 v{P[q]}, v{P[q]}, {srcs[3]}, {tm(3)}')
        for q in range(ngrp): rbf16(a, f'v{P[q]}', f'v{P[q]}')
        for q in range(ngrp): a(f'v_mul_f32 v{P[q]}, {fhex(SCALE)}, v{P[q]}')
        for q in range(ngrp): rbf16(a, f'v{P[q]}', f'v{P[q]}')
        for q in range(ngrp): a(f'v_mul_f32 v{P[q]}, {fhex(LOG2E)}, v{P[q]}')
        vMx, vLs = 'v67', 'v68'
        if ngrp == 2:
            a(f'v_max_f32 {vMx}, v{P[0]}, v{P[1]}')
        else:
            a(f'v_mov_b32 {vMx}, v{P[0]}')
        row_allreduce(a, 'v_max_f32', vMx)
        cross_allreduce(a, 'v_max_f32', vMx, t0)
        PK = [69, 70]
        for q in range(ngrp): a(f'v_sub_f32 v{P[q]}, v{P[q]}, {vMx}')
        for q in range(ngrp): a(f'v_exp_f32 v{P[q]}, v{P[q]}')
        for q in range(ngrp): a(f'v_cvt_pk_bf16_f32 v{PK[q]}, v{P[q]}, v{P[q]}')
        for q in range(ngrp): a(f'v_and_b32 v{P[q]}, 0xffff0000, v{PK[q]}')
        if ngrp == 2:
            a(f'v_add_f32 {vLs}, v{P[0]}, v{P[1]}')
        else:
            a(f'v_mov_b32 {vLs}, v{P[0]}')
        stamp(4)
        AP = [72, 76]
        OA = 80
        def selA(i, dst):
            T, kp = i >> 2, i & 3
            for r in range(4):
                a(f'v_and_b32_dpp v{dst+r}, v{PK[T>>2]}, {vM[r]} row_newbcast:{4*kp + (T&3)} {DPPALL}')
        a(f'''
        s_lshl_b32 s62, {sH}, 17
        s_lshl_b32 s63, {sJ}, 7
        s_add_u32 s62, s62, s63
        ''')
        srd(a, S_W2, 's24', 's25', 127 * 1024 + 128, 's62')
        a(f'''
        v_lshrrev_b32 {t1}, 3, {vL}
        v_and_b32 {t2}, 7, {vL}
        v_lshlrev_b32 {t2}, 4, {t2}
        v_lshl_add_u32 {t5}, {t1}, 10, {t2}     ; (l>>3)*1024 + (l&7)*16
        ''')
        issued = nV0
        extra = 0
        selA(0, AP[0])
        row_allreduce(a, 'v_add_f32', vLs)
        cross_allreduce(a, 'v_add_f32', vLs, t0)
        for i in range(nL):
            if issued < nL:
                vload(issued); issued += 1
            elif extra < 2:
                if extra == 0:
                    a(f's_lshl_b32 s62, {sW}, 14')
                    a(f's_lshl_b32 s63, {sW}, 11')
                else:
                    a(f's_add_u32 s62, s62, 8192')
                a(f's_add_u32 m0, s63, {L_WO + 1024*extra}')
                a(f'buffer_load_dwordx4 {t5}, s[{S_W2}:{S_W2+3}], s62 offen lds{cfg.wf}')
                extra += 1
            if i + 1 < nL: selA(i + 1, AP[(i + 1) & 1])
            a(f's_waitcnt vmcnt({issued + extra - (i + 1)})')
            c = '0' if i == 0 else vr(OA)
            a(f'v_mfma_f32_16x16x32_bf16 {vr(OA)}, {vr(AP[i&1])}, {vr(VB+4*i)}, {c}')
        while extra < 2:
            if extra == 0:
                a(f's_lshl_b32 s62, {sW}, 14')
                a(f's_lshl_b32 s63, {sW}, 11')
            else:
                a(f's_add_u32 s62, s62, 8192')
            a(f's_add_u32 m0, s63, {L_WO + 1024*extra}')
            a(f'buffer_load_dwordx4 {t5}, s[{S_W2}:{S_W2+3}], s62 offen lds{cfg.wf}')
            extra += 1
        stamp(26)
        a(f'''
        v_lshlrev_b32 {t0}, 5, {vN}
        v_lshl_add_u32 {t0}, {vS}, 4, {t0}
        s_lshl_b32 s62, {sW}, 9
        v_add_u32 {t0}, s62, {t0}
        v_mov_b32 v16, {vMx}
        v_mov_b32 v17, {vLs}
        s_lshl_b32 s62, {sW}, 3
        v_mov_b32 {t1}, s62
        s_mov_b32 exec_hi, 0
        ds_write_b128 {t0}, {vr(OA)} offset:{L_OP}
        s_mov_b32 exec_lo, 1
        ds_write_b64 {t1}, v[16:17] offset:{L_ML}
        s_mov_b64 exec, -1
        ''')

    def cross32(a, v, tmp):
        a(f'v_mov_b32 {tmp}, {v}')
        a(f'v_permlane32_swap_b32 {v}, {tmp}')
        a(f'v_add_f32 {v}, {v}, {tmp}')

    def ln_finish(sm, sq, tmp):
        a(f'v_mul_f32 {sm}, {fhex(1/512)}, {sm}')
        a(f'v_mul_f32 {sq}, {fhex(1/512)}, {sq}')
        a(f'v_fma_f32 {sq}, -{sm}, {sm}, {sq}')
        a(f'v_max_f32 {sq}, 0, {sq}')
        rbf16(a, sm, sm)
        rbf16(a, sq, sq)
        a(f'v_add_f32 {sq}, {fhex(1e-5)}, {sq}')
        rbf16(a, sq, sq)
        a(f'v_sqrt_f32 {sq}, {sq}')
        rbf16(a, sq, sq)
        a(f'v_rcp_f32 {sq}, {sq}')

    if nT0 == nT1:
        attention(nT0)
    else:
        l1, lj = a.label('Latt1'), a.label('Lattj')
        a(f's_cmp_lg_u32 {sSig}, 0')
        a(f's_cbranch_scc1 {l1}')
        attention(nT0)
        a(f's_branch {lj}')
        a(f'{l1}:')
        a('s_nop 4')
        attention(nT1)
        a(f'{lj}:')
        a('s_nop 4')

    a('''
    s_waitcnt lgkmcnt(0)
    s_barrier
    ''')
    stamp(5)
    lm = a.label('Lm')
    a(f's_lshl_b32 s62, {sH}, 13')
    a(f's_add_u32 s62, s62, {WS_O}')
    a(f's_cmp_lg_u32 {sW}, 0')
    a(f's_cbranch_scc1 {lm}')
    a(f'''
    v_and_b32 {t0}, 7, {vL}
    v_lshlrev_b32 {t0}, 3, {t0}
    ds_read_b64 v[16:17], {t0} offset:{L_ML}
    v_lshlrev_b32 {t1}, 3, {vL}
    ''')
    for w in range(8):
        a(f'ds_read_b64 v[{20+2*w}:{21+2*w}], {t1} offset:{L_OP + 512*w}')
    a('s_waitcnt lgkmcnt(8)')
    a('v_mov_b32 v18, v16')
    row_allreduce(a, 'v_max_f32', 'v18', steps=(4, 2, 1))
    a('v_sub_f32 v16, v16, v18')
    a('v_exp_f32 v16, v16')
    a('v_mul_f32 v17, v17, v16')
    a('v_mov_b32 v19, v17')
    row_allreduce(a, 'v_add_f32', 'v19', steps=(4, 2, 1))
    a(f'v_rcp_f32 {t0}, v19')
    a(f'v_mul_f32 v16, v16, {t0}')
    a(f's_lshl_b32 s63, {sJ}, 10')
    a(f's_add_u32 s63, s63, s62')
    a('s_waitcnt lgkmcnt(0)')
    a(f'v_mul_f32_dpp v36, v16, v20 row_newbcast:0 {DPPALL}')
    a(f'v_mul_f32_dpp v37, v16, v21 row_newbcast:0 {DPPALL}')
    for w in range(1, 8):
        a(f'v_fmac_f32_dpp v36, v16, v{20+2*w} row_newbcast:{w} {DPPALL}')
        a(f'v_fmac_f32_dpp v37, v16, v{21+2*w} row_newbcast:{w} {DPPALL}')
    a(f'''
    v_cvt_pk_bf16_f32 v36, v36, v37
    v_mov_b32 v37, {sTag}
    buffer_store_dwordx2 v[36:37], {t1}, s[{S_WS}:{S_WS+3}], s63 offen sc1
    v_mov_b32 v40, v18
    v_mov_b32 v41, {sTag}
    v_mov_b32 v42, v19
    v_mov_b32 v43, {sTag}
    s_mov_b64 exec, 1
    buffer_store_dwordx4 v[40:43], {t1}, s[{S_WS}:{S_WS+3}], s63 offen offset:512 sc1
    s_mov_b64 exec, -1
    {lm}:
    ''')
    a(f'''
    s_lshl_b32 s63, {sW}, 10
    s_add_u32 s63, s63, s62
    v_lshlrev_b32 {t1}, 4, {vL}
    s_mov_b32 s14, -1
    s_mov_b32 s15, 1
    s_mov_b64 exec, s[14:15]
    ''')
    poll([f'buffer_load_dwordx4 v[16:19], {t1}, s[{S_WS}:{S_WS+3}], s63 offen sc1'], ['v17', 'v19'], exp='s[14:15]', name='O')
    a(f'''
    s_mul_i32 s63, {sW}, 272
    s_add_u32 s63, s63, {L_OB}
    v_lshl_add_u32 {t2}, {vL}, 3, s63
    ds_write2_b32 {t2}, v16, v18 offset0:0 offset1:1
    ''')
    a('''
    s_mov_b64 exec, -1
    s_waitcnt lgkmcnt(0)
    s_barrier
    ''')
    stamp(6)
    l_tail = a.label('Ltail')
    a(f's_cmp_ge_u32 {sW}, 4')
    a(f's_cbranch_scc1 {l_tail}')
    OB, WA, YD = 16, 32, 48
    a(f'''
    v_and_b32 {t0}, 7, {vL}
    v_mul_u32_u24 {t0}, 272, {t0}
    v_lshl_add_u32 {t1}, {vS}, 4, {t0}
    ''')
    for kk in range(4):
        a(f'ds_read_b128 {vr(OB+4*kk)}, {t1} offset:{L_OB + 64*kk}')
    a(f'ds_read_b64 v[52:53], {t0} offset:{L_OB + 256}')
    a(f'''
    v_lshrrev_b32 {t2}, 2, {vN}
    v_lshl_add_u32 {t2}, {vS}, 3, {t2}
    v_lshlrev_b32 {t2}, 7, {t2}
    v_and_b32 {t3}, 3, {vL}
    v_lshl_add_u32 {t2}, {t3}, 3, {t2}
    s_lshl_b32 s63, {sW}, 5
    v_add_u32 {t2}, s63, {t2}
    ''')
    for kk in range(4):
        for hh in range(2):
            a(f'ds_read_b64_tr_b16 v[{WA+4*kk+2*hh}:{WA+4*kk+2*hh+1}], {t2} offset:{L_WO + (32*kk+4*hh)*128}')
    a(f'''
    v_and_b32 {t3}, 3, {vL}
    v_lshlrev_b32 {t3}, 17, {t3}            ; b'*32*4096
    v_lshrrev_b32 {t4}, 2, {vN}
    v_lshl_add_u32 {t4}, {vS}, 2, {t4}      ; 4g + a
    v_lshl_add_u32 {t3}, {t4}, 3, {t3}
    s_lshl_b32 s62, {sH}, 12
    s_lshl_b32 s63, {sJ}, 9
    s_add_u32 s62, s62, s63
    s_lshl_b32 s63, {sW}, 7
    s_add_u32 s62, s62, s63
    s_add_u32 s62, s62, {WS_Y}
    s_waitcnt lgkmcnt(8)
    ; scale
    v_max_f32_dpp v54, v52, v52 row_ror:4 {DPPALL}
    ''')
    a(f'''
    v_sub_f32 v52, v52, v54
    v_exp_f32 v52, v52
    v_mul_f32 v52, v52, v53
    v_add_f32_dpp v53, v52, v52 row_ror:4 {DPPALL}
    v_rcp_f32 v53, v53
    v_mul_f32 v52, v52, v53
    s_waitcnt lgkmcnt(0)
    ''')
    for kk in range(4):
        c = '0' if kk == 0 else vr(YD)
        a(f'v_mfma_f32_16x16x32_bf16 {vr(YD)}, {vr(WA+4*kk)}, {vr(OB+4*kk)}, {c}')
    for r in range(4): a(f'v_mul_f32 v{YD+r}, v{YD+r}, v52')
    for r in range(4): a(f'v_add_f32_dpp v{YD+r}, v{YD+r}, v{YD+r} row_ror:4 {DPPALL}')
    a(f'''
    v_cndmask_b32 v54, v{YD}, v{YD+1}, {km(1)}
    v_cndmask_b32 v54, v54, v{YD+2}, {km(2)}
    v_cndmask_b32 v54, v54, v{YD+3}, {km(3)}
    v_mov_b32 v55, {sTag}
    buffer_store_dwordx2 v[54:55], {t3}, s[{S_WS}:{S_WS+3}], s62 offen sc1
    ''')
    stamp(7)
    a(f'{l_tail}:')
    a('s_nop 4')
    l_red, l_fin, l_done = a.label('Lred'), a.label('Lfin'), a.label('Ldone')
    a(f's_cmp_ge_u32 {sSlot}, 16')
    a(f's_cbranch_scc1 {l_red}')
    a(f's_cmp_ge_u32 {sSlot}, 12')
    a(f's_cbranch_scc1 {l_fin}')
    sF = 's12'
    a(f'''
    s_lshr_b32 s13, {sSlot}, 2
    s_lshl_b32 s13, s13, 3
    s_add_u32 s13, s13, {sX}
    s_lshl_b32 s13, s13, 2
    s_and_b32 {sF}, {sSlot}, 3
    s_add_u32 {sF}, {sF}, s13
    s_cmp_ge_u32 {sF}, {NFF}
    s_cbranch_scc1 {l_done}
    s_lshl_b32 s13, {sF}, 5
    ''')
    srd(a, S_W1, 's28', 's29', 511 * 2752 + 32, 's13')
    srd(a, S_W2, 's30', 's31', 511 * 2752 + 32, 's13')
    a(f'''
    v_lshrrev_b32 {t0}, 1, {vL}
    v_mul_u32_u24 {t0}, 2752, {t0}
    v_and_b32 {t1}, 1, {vL}
    v_lshl_add_u32 {t0}, {t1}, 4, {t0}
    s_mul_i32 s14, {sW}, {64*2752}
    s_add_u32 s15, s14, {32*2752}
    s_lshl_b32 s62, {sW}, 11
    s_add_u32 m0, s62, {L_FF}
    buffer_load_dwordx4 {t0}, s[{S_W1}:{S_W1+3}], s14 offen lds{cfg.wf}
    s_add_u32 m0, s62, {L_FF+1024}
    buffer_load_dwordx4 {t0}, s[{S_W1}:{S_W1+3}], s15 offen lds{cfg.wf}
    s_add_u32 m0, s62, {L_FF+16384}
    buffer_load_dwordx4 {t0}, s[{S_W2}:{S_W2+3}], s14 offen lds{cfg.wf}
    s_add_u32 m0, s62, {L_FF+16384+1024}
    buffer_load_dwordx4 {t0}, s[{S_W2}:{S_W2+3}], s15 offen lds{cfg.wf}
    v_lshl_add_u32 {t1}, {vL}, 3, s62
    s_waitcnt vmcnt(0)
    ''')
    GA, UA = 16, 24
    for u in range(4):
        a(f'ds_read_b64_tr_b16 v[{GA+2*u}:{GA+2*u+1}], {t1} offset:{L_FF + 512*u}')
        a(f'ds_read_b64_tr_b16 v[{UA+2*u}:{UA+2*u+1}], {t1} offset:{L_FF + 16384 + 512*u}')
    CG, CU = 32, 36
    a(f'v_mov_b32 v40, {sOnes}')
    a(f'v_mov_b32 v41, {sOnes}')
    a('s_waitcnt lgkmcnt(0)')
    for u in range(4):
        a(f'v_mfma_f32_16x16x16_bf16 {vr(CG)}, {vr(GA+2*u,2)}, v[40:41], {"0" if u == 0 else vr(CG)}')
        a(f'v_mfma_f32_16x16x16_bf16 {vr(CU)}, {vr(UA+2*u,2)}, v[40:41], {"0" if u == 0 else vr(CU)}')
    a(f'''
    v_lshlrev_b32 {t2}, 4, {vS}
    s_lshl_b32 s63, {sW}, 7
    v_add_u32 {t2}, s63, {t2}
    s_mov_b32 s14, 0x00010001
    s_mov_b32 s15, 0x00010001
    s_mov_b64 exec, s[14:15]
    ds_write_b128 {t2}, {vr(CG)} offset:{L_FC}
    ds_write_b128 {t2}, {vr(CU)} offset:{L_FC+64}
    s_mov_b64 exec, -1
    v_and_b32 {t3}, 3, {vL}
    v_lshlrev_b32 {t3}, 11, {t3}
    v_lshrrev_b32 {t4}, 2, {vN}
    v_lshl_add_u32 {t3}, {t4}, 6, {t3}
    v_lshl_add_u32 {t3}, {vS}, 4, {t3}
    s_and_b32 s62, {sF}, {cfg.HR-1}
    s_lshl_b32 s62, s62, 13
    s_lshl_b32 s63, {sW}, 8
    s_add_u32 s62, s62, s63
    s_add_u32 s62, s62, {WS_H}
    s_waitcnt lgkmcnt(0)
    s_barrier
    ''')
    lc = a.label('Lc')
    a(f's_cmp_lg_u32 {sW}, 0')
    a(f's_cbranch_scc1 {lc}')
    a(f'''
    v_lshrrev_b32 {t0}, 5, {vL}
    v_and_b32 {t1}, 7, {vL}
    v_lshlrev_b32 {t1}, 3, {t1}
    v_lshl_add_u32 {t0}, {t0}, 9, {t1}
    ''')
    for i in range(4):
        a(f'ds_read_b64 v[{64+2*i}:{65+2*i}], {t0} offset:{L_FC + 128*i}')
        a(f'ds_read_b64 v[{72+2*i}:{73+2*i}], {t0} offset:{L_FC + 128*i + 64}')
    a('s_waitcnt lgkmcnt(0)')
    for base in (64, 72):
        a(f'v_add_f32 v{base}, v{base}, v{base+2}')
        a(f'v_add_f32 v{base+1}, v{base+1}, v{base+3}')
        a(f'v_add_f32 v{base+4}, v{base+4}, v{base+6}')
        a(f'v_add_f32 v{base+5}, v{base+5}, v{base+7}')
        a(f'v_add_f32 v{base}, v{base}, v{base+4}')
        a(f'v_add_f32 v{base+1}, v{base+1}, v{base+5}')
    for rg in ('v64', 'v65', 'v72', 'v73'):
        cross32(a, rg, 'v66')
    a(f'{lc}:')
    a('s_nop 4')
    poll([f'buffer_load_dwordx4 v[44:47], {t3}, s[{S_WS}:{S_WS+3}], s62 offen sc1'], ['v45', 'v47'], name='H')
    stamp(8)
    BU = 48
    for u in range(4):
        a(f'v_cndmask_b32 v{BU+2*u}, 0, v44, {km(u)}')
        a(f'v_cndmask_b32 v{BU+2*u+1}, 0, v46, {km(u)}')
    for u in range(4):
        a(f'v_mfma_f32_16x16x16_bf16 {vr(CG)}, {vr(GA+2*u,2)}, {vr(BU+2*u,2)}, {"0" if u == 0 else vr(CG)}')
        a(f'v_mfma_f32_16x16x16_bf16 {vr(CU)}, {vr(UA+2*u,2)}, {vr(BU+2*u,2)}, {"0" if u == 0 else vr(CU)}')
    a(f'''
    v_dot2_f32_bf16 v56, v44, {sOnes}, 0
    v_dot2_f32_bf16 v57, v44, v44, 0
    v_dot2_f32_bf16 v56, v46, {sOnes}, v56
    v_dot2_f32_bf16 v57, v46, v46, v57
    ''')
    for d in (4, 8):
        a(f'v_add_f32_dpp v56, v56, v56 row_ror:{d} {DPPALL}')
        a(f'v_add_f32_dpp v57, v57, v57 row_ror:{d} {DPPALL}')
    cross_allreduce(a, 'v_add_f32', 'v56', 'v58')
    cross_allreduce(a, 'v_add_f32', 'v57', 'v59')
    red_u(CG); red_u(CU)
    a(f'''
    v_lshlrev_b32 {t0}, 6, {vN}
    v_lshl_add_u32 {t0}, {vS}, 4, {t0}
    s_lshl_b32 s63, {sW}, 9
    v_add_u32 {t0}, s63, {t0}               ; w*512 + b'*64 + g*16
    s_lshl_b32 s63, {sW}, 5
    v_lshl_add_u32 {t1}, {vN}, 3, s63       ; w*32 + b'*8
    s_mov_b64 exec, {km(0)}
    ds_write_b128 {t0}, {vr(CG)} offset:{L_FP}
    ds_write_b128 {t0}, {vr(CU)} offset:{L_FP+256}
    s_mov_b64 exec, 15
    ds_write_b64 {t1}, v[56:57] offset:{L_FS}
    s_mov_b64 exec, -1
    s_waitcnt lgkmcnt(0)
    s_barrier
    s_cmp_lg_u32 {sW}, 0
    s_cbranch_scc1 {l_done}
    v_lshrrev_b32 {t0}, 5, {vL}
    v_and_b32 {t1}, 31, {vL}
    v_lshlrev_b32 {t2}, 3, {t1}
    v_lshl_add_u32 {t2}, {t0}, 11, {t2}
    v_lshrrev_b32 {t3}, 3, {t1}             ; b'
    v_lshlrev_b32 {t4}, 3, {t3}
    v_lshl_add_u32 {t4}, {t0}, 7, {t4}      ; half*4*32 + b'*8
    ''')
    for i in range(4):
        a(f'ds_read_b64 v[{16+2*i}:{17+2*i}], {t2} offset:{L_FP + 512*i}')
        a(f'ds_read_b64 v[{24+2*i}:{25+2*i}], {t2} offset:{L_FP + 512*i + 256}')
        a(f'ds_read_b64 v[{32+2*i}:{33+2*i}], {t4} offset:{L_FS + 32*i}')
    a(f'''
    v_mul_u32_u24 {t3}, {HID_B}, {t3}
    v_and_b32 {t1}, 7, {vL}
    v_lshl_add_u32 {t3}, {t1}, 3, {t3}
    v_mul_u32_u24 {t0}, {HID_REP}, {t0}
    v_add_u32 {t3}, {t3}, {t0}
    s_lshl_b32 s62, {sF}, 6
    s_add_u32 s62, s62, {WS_HID}
    s_waitcnt lgkmcnt(0)
    ''')
    for base in (32, 16, 24):
        a(f'v_add_f32 v{base}, v{base}, v{base+2}')
        a(f'v_add_f32 v{base+1}, v{base+1}, v{base+3}')
        a(f'v_add_f32 v{base+4}, v{base+4}, v{base+6}')
        a(f'v_add_f32 v{base+5}, v{base+5}, v{base+7}')
        a(f'v_add_f32 v{base}, v{base}, v{base+4}')
        a(f'v_add_f32 v{base+1}, v{base+1}, v{base+5}')
    for rg, tmp in (('v32', 'v34'), ('v33', 'v35'), ('v16', 'v18'), ('v17', 'v19'), ('v24', 'v26'), ('v25', 'v27')):
        cross32(a, rg, tmp)
    ln_finish('v32', 'v33', 'v34')
    a(f'''
    v_fma_f32 v16, -v32, v64, v16
    v_fma_f32 v17, -v32, v65, v17
    v_fma_f32 v24, -v32, v72, v24
    v_fma_f32 v25, -v32, v73, v25
    v_mul_f32 v16, v33, v16
    v_mul_f32 v17, v33, v17
    v_mul_f32 v24, v33, v24
    v_mul_f32 v25, v33, v25
    v_cvt_pk_bf16_f32 v18, v16, v17
    v_cvt_pk_bf16_f32 v26, v24, v25
    v_lshlrev_b32 v16, 16, v18
    v_and_b32 v17, 0xffff0000, v18
    v_lshlrev_b32 v24, 16, v26
    v_and_b32 v25, 0xffff0000, v26
    v_mul_f32 v16, v16, v24
    v_mul_f32 v17, v17, v25
    v_cvt_pk_bf16_f32 v16, v16, v17
    v_mov_b32 v17, {sTag}
    buffer_store_dwordx2 v[16:17], {t3}, s[{S_WS}:{S_WS+3}], s62 offen sc1
    ''')
    stamp(9)
    a(f's_branch {l_done}')
    a(f'{l_red}:')
    a(f'''
    s_cmp_lg_u32 {sW}, 4
    s_cbranch_scc1 {l_done}
    s_sub_u32 s12, {sSlot}, 16
    s_lshl_b32 s12, s12, 3
    s_add_u32 s12, s12, {sX}         ; rho
    s_lshr_b32 s13, s12, 5           ; b'
    s_and_b32 s12, s12, 31           ; slice
    v_lshrrev_b32 {t0}, 3, {vL}
    v_and_b32 {t1}, 7, {vL}
    ; x pair
    v_lshlrev_b32 {t2}, 2, {t1}
    s_lshl_b32 s14, s13, 10
    s_lshl_b32 s15, s12, 5
    s_add_u32 s14, s14, s15
    buffer_load_dword v40, {t2}, s[{S_X}:{S_X+3}], s14 offen
    v_lshlrev_b32 {t2}, 4, {t1}
    v_lshl_add_u32 {t2}, {t0}, 12, {t2}     ; r8*4096 + c*16
    s_lshl_b32 s14, s13, 17
    s_lshl_b32 s15, s12, 7
    s_add_u32 s14, s14, s15
    s_add_u32 s14, s14, {WS_Y}
    s_add_u32 s15, s14, 32768
    s_add_u32 s62, s14, 65536
    s_add_u32 s63, s14, 98304
    v_lshlrev_b32 {t3}, 3, {t1}
    v_lshl_add_u32 {t3}, {t0}, 13, {t3}
    ''')
    yl = [f'buffer_load_dwordx4 {vr(16+4*i)}, {t2}, s[{S_WS}:{S_WS+3}], {["s14","s15","s62","s63"][i]} offen sc1' for i in range(4)]
    ytags = []
    for i in range(4): ytags += [f'v{17+4*i}', f'v{19+4*i}']
    poll(yl, ytags, name='Y')
    stamp(8)
    a(f'''
    v_add_f32 v16, v16, v20
    v_add_f32 v18, v18, v22
    v_add_f32 v24, v24, v28
    v_add_f32 v26, v26, v30
    v_add_f32 v16, v16, v24
    v_add_f32 v18, v18, v26
    v_add_f32_dpp v16, v16, v16 row_ror:8 {DPPALL}
    v_add_f32_dpp v18, v18, v18 row_ror:8 {DPPALL}
    ''')
    cross_allreduce(a, 'v_add_f32', 'v16', 'v20')
    cross_allreduce(a, 'v_add_f32', 'v18', 'v21')
    a(f'''
    v_cvt_pk_bf16_f32 v16, v16, v18
    v_lshlrev_b32 v20, 16, v16
    v_and_b32 v21, 0xffff0000, v16
    v_lshlrev_b32 v22, 16, v40
    v_and_b32 v23, 0xffff0000, v40
    v_add_f32 v20, v20, v22
    v_add_f32 v21, v21, v23
    v_cvt_pk_bf16_f32 v16, v20, v21
    v_mov_b32 v17, {sTag}
    s_lshl_b32 s14, s13, 11
    s_lshl_b32 s15, s12, 6
    s_add_u32 s14, s14, s15
    s_add_u32 s14, s14, {WS_H}
    ''')
    if cfg.HR < 8:
        a(f's_mov_b32 s62, {hex((1 << (8*cfg.HR)) - 1 & 0xffffffff)}')
        a(f's_mov_b32 s63, {hex(((1 << (8*cfg.HR)) - 1) >> 32)}')
        a('s_mov_b64 exec, s[62:63]')
    a(f'buffer_store_dwordx2 v[16:17], {t3}, s[{S_WS}:{S_WS+3}], s14 offen sc1')
    a('s_mov_b64 exec, -1')
    stamp(9)
    a(f's_branch {l_done}')
    a(f'{l_fin}:')
    sD = 's12'
    a(f'''
    s_lshl_b32 {sD}, {sX}, 2
    s_add_u32 {sD}, {sD}, {sSlot}
    s_sub_u32 {sD}, {sD}, 12          ; jd
    s_lshl_b32 s13, {sD}, 5
    ''')
    srd(a, S_W1, 's32', 's33', 1375 * 1024 + 32, 's13')
    lz = a.label('Lz')
    a(f'''
    v_mov_b32 v16, 0
    v_mov_b32 v17, 0
    v_mov_b32 v18, 0
    v_mov_b32 v19, 0
    v_lshlrev_b32 {t0}, 4, {vL}
    v_add_u32 {t0}, {L_FF + 21*2048 + 1024}, {t0}
    s_cmp_lg_u32 {sW}, 5
    s_cbranch_scc1 {lz}
    ds_write_b128 {t0}, v[16:19]
    {lz}:
    v_lshrrev_b32 {t0}, 1, {vL}
    v_lshlrev_b32 {t0}, 10, {t0}
    v_and_b32 {t1}, 1, {vL}
    v_lshl_add_u32 {t0}, {t1}, 4, {t0}       ; (l>>1)*1024 + (l&1)*16
    ''')
    for t in range(3):
        lskip = a.label('Lg')
        a(f's_add_u32 s13, {sW}, {8*t}')
        if t == 2:
            a(f's_cmp_ge_u32 s13, 22')
            a(f's_cbranch_scc1 {lskip}')
        a(f's_lshl_b32 s14, s13, 16')
        a(f's_lshl_b32 s15, s13, 11')
        a(f's_add_u32 m0, s15, {L_FF}')
        a(f'buffer_load_dwordx4 {t0}, s[{S_W1}:{S_W1+3}], s14 offen lds{cfg.wf}')
        if t == 2:
            a(f's_cmp_eq_u32 s13, 21')
            a(f's_cbranch_scc1 {lskip}')
        a(f's_add_u32 s14, s14, 32768')
        a(f's_add_u32 m0, s15, {L_FF+1024}')
        a(f'buffer_load_dwordx4 {t0}, s[{S_W1}:{S_W1+3}], s14 offen lds{cfg.wf}')
        if t == 2:
            a(f'{lskip}:')
    a(f'''
    v_lshrrev_b32 {t2}, 2, {vN}
    v_and_b32 {t3}, 3, {vL}
    v_mul_u32_u24 {t3}, {HID_B}, {t3}
    v_lshl_add_u32 {t3}, {t2}, 6, {t3}
    v_lshl_add_u32 {t3}, {vS}, 4, {t3}       ; b'*5632 + u'*64 + s*16
    s_lshr_b32 s13, {sD}, 4
    s_mul_i32 s13, s13, {HID_REP}
    s_lshl_b32 s14, {sW}, 8
    s_add_u32 s13, s13, s14
    s_add_u32 s62, s13, {WS_HID}             ; + w*256
    s_add_u32 s63, s62, 2048
    s_add_u32 s79, s62, 4096
    s_lshl_b32 s14, {sW}, 11
    v_lshl_add_u32 {t1}, {vL}, 3, s14
    s_waitcnt vmcnt(0) lgkmcnt(0)
    ''')
    DA = 16
    for t in range(3):
        for u in range(4):
            a(f'ds_read_b64_tr_b16 v[{DA+8*t+2*u}:{DA+8*t+2*u+1}], {t1} offset:{L_FF + 16384*t + 512*u}')
    HB = 40
    a(f'''
    s_mov_b32 s14, -1
    s_mov_b32 s15, -1
    s_cmp_lt_u32 {sW}, 5
    s_cbranch_scc1 Lfv_done
    s_mov_b32 s14, 0x00ff00ff
    s_mov_b32 s15, 0x00ff00ff
    s_cmp_eq_u32 {sW}, 5
    s_cbranch_scc1 Lfv_done
    s_mov_b32 s14, 0
    s_mov_b32 s15, 0
    Lfv_done:
    v_mov_b32 v48, 0
    v_mov_b32 v50, 0
    v_mov_b32 v49, {sTag}
    v_mov_b32 v51, {sTag}
    ''')
    lp, dn = a.label('Flp'), a.label('Fdn')
    a(f's_mov_b32 {sCnt}, {LIMIT}')
    a(f'{lp}:')
    a('s_nop 1')
    a(f'buffer_load_dwordx4 {vr(HB)}, {t3}, s[{S_WS}:{S_WS+3}], s62 offen sc1')
    a(f'buffer_load_dwordx4 {vr(HB+4)}, {t3}, s[{S_WS}:{S_WS+3}], s63 offen sc1')
    lsk = a.label('Fsk')
    a(f's_cmp_ge_u32 {sW}, 6')
    a(f's_cbranch_scc1 {lsk}')
    a('s_mov_b64 exec, s[14:15]')
    a(f'buffer_load_dwordx4 {vr(HB+8)}, {t3}, s[{S_WS}:{S_WS+3}], s79 offen sc1')
    a('s_mov_b64 exec, -1')
    a(f'{lsk}:')
    a('s_waitcnt vmcnt(0)')
    check([f'v{HB+1}', f'v{HB+3}', f'v{HB+5}', f'v{HB+7}', f'v{HB+9}', f'v{HB+11}'])
    a(f's_cbranch_scc1 {dn}')
    a(f's_sub_u32 {sCnt}, {sCnt}, 1')
    a(f's_cmp_lg_u32 {sCnt}, 0')
    a(f's_cbranch_scc1 {lp}')
    a(f'{dn}:')
    a('s_nop 1')
    stamp(8)
    a('s_waitcnt lgkmcnt(0)')
    FB, FD = 52, 76
    for t in range(3):
        for u in range(4):
            a(f'v_cndmask_b32 v{FB+8*t+2*u}, 0, v{HB+4*t}, {km(u)}')
            a(f'v_cndmask_b32 v{FB+8*t+2*u+1}, 0, v{HB+4*t+2}, {km(u)}')
    for t in range(2):
        for u in range(4):
            c = '0' if (t == 0 and u == 0) else vr(FD)
            a(f'v_mfma_f32_16x16x16_bf16 {vr(FD)}, {vr(DA+8*t+2*u,2)}, {vr(FB+8*t+2*u,2)}, {c}')
    l3 = a.label('Lf3')
    a(f's_cmp_ge_u32 {sW}, 6')
    a(f's_cbranch_scc1 {l3}')
    for u in range(4):
        a(f'v_mfma_f32_16x16x16_bf16 {vr(FD)}, {vr(DA+16+2*u,2)}, {vr(FB+16+2*u,2)}, {vr(FD)}')
    a(f'{l3}:')
    a('s_nop 7')
    a('s_nop 1')
    red_u(FD)
    a(f'''
    v_lshlrev_b32 {t0}, 6, {vN}
    v_lshl_add_u32 {t0}, {vS}, 4, {t0}
    s_lshl_b32 s63, {sW}, 8
    v_add_u32 {t0}, s63, {t0}               ; w*256 + b'*64 + g*16
    s_mov_b64 exec, {km(0)}
    ds_write_b128 {t0}, {vr(FD)} offset:{L_FP}
    s_mov_b64 exec, -1
    s_waitcnt lgkmcnt(0)
    s_barrier
    s_cmp_lg_u32 {sW}, 0
    s_cbranch_scc1 {l_done}
    v_lshrrev_b32 {t0}, 5, {vL}
    v_and_b32 {t1}, 31, {vL}
    v_lshlrev_b32 {t2}, 3, {t1}
    v_lshl_add_u32 {t2}, {t0}, 10, {t2}     ; half*4*256 + l31*8
    ''')
    for i in range(4):
        a(f'ds_read_b64 v[{16+2*i}:{17+2*i}], {t2} offset:{L_FP + 256*i}')
    a(f'''
    v_lshrrev_b32 {t3}, 3, {t1}             ; b'
    v_and_b32 {t4}, 7, {vL}                 ; pair
    v_lshlrev_b32 {t5}, 11, {t3}
    v_lshl_add_u32 {t5}, {t4}, 3, {t5}
    s_and_b32 s62, {sD}, {cfg.HR-1}
    s_lshl_b32 s62, s62, 13
    s_lshl_b32 s63, {sD}, 6
    s_add_u32 s62, s62, s63
    s_add_u32 s62, s62, {WS_H}
    ''')
    poll([f'buffer_load_dwordx2 v[30:31], {t5}, s[{S_WS}:{S_WS+3}], s62 offen sc1'], ['v31'], name='G')
    srd(a, S_W2, 's34', 's35', 4096)
    a(f'''
    s_waitcnt lgkmcnt(0)
    v_add_f32 v16, v16, v18
    v_add_f32 v17, v17, v19
    v_add_f32 v20, v20, v22
    v_add_f32 v21, v21, v23
    v_add_f32 v16, v16, v20
    v_add_f32 v17, v17, v21
    ''')
    cross32(a, 'v16', 'v18'); cross32(a, 'v17', 'v19')
    a(f'''
    v_cvt_pk_bf16_f32 v16, v16, v17
    v_lshlrev_b32 v18, 16, v16
    v_and_b32 v19, 0xffff0000, v16
    v_lshlrev_b32 v20, 16, v30
    v_and_b32 v21, 0xffff0000, v30
    v_add_f32 v18, v18, v20
    v_add_f32 v19, v19, v21
    v_cvt_pk_bf16_f32 v16, v18, v19
    v_lshlrev_b32 {t5}, 10, {t3}
    v_lshl_add_u32 {t5}, {t4}, 2, {t5}      ; b'*1024 + pair*4
    s_lshl_b32 s62, {sD}, 5
    s_mov_b32 exec_hi, 0
    buffer_store_dword v16, {t5}, s[{S_W2}:{S_W2+3}], s62 offen
    s_mov_b32 exec_hi, -1
    s_cmp_lg_u32 {sD}, 0
    s_cbranch_scc1 Lfin_noep
    v_mov_b32 v16, {sTag}
    v_mov_b32 v17, 0
    s_mov_b64 exec, 1
    buffer_store_dword v16, v17, s[{S_WS}:{S_WS+3}], 0 offen sc1
    s_mov_b64 exec, -1
    Lfin_noep:
    ''')
    stamp(9)
    a(f'{l_done}:')
    stamp(10)
    dump_stamps()
    a('L_end:')
    a('s_endpgm')
    blk = kernel_block(NAME + '_kernel', a.text(), vgpr=256, sgpr=102)
    return file_text([f'; @launch grid=(256,1,1) block=(512,1,1) lds={L_END}'], [blk])


if __name__ == '__main__':
    import json
    out = sys.argv[1]
    kw = json.loads(sys.argv[2]) if len(sys.argv) > 2 else {}
    if 'nT' in kw: kw['nT'] = tuple(kw['nT'])
    if 'stampmap' in kw: kw['stampmap'] = {int(k): v for k, v in kw['stampmap'].items()}
    open(out, 'w').write(gen(Cfg(**kw)))
```
